```python
import torch

def _softmax(x, axis=-1):
    return torch.softmax(x, dim=axis)
def _gelu(x):
    return torch.nn.functional.gelu(x, approximate="tanh")
def _silu(x):
    return torch.nn.functional.silu(x)
def _sigmoid(x):
    return torch.sigmoid(x)
def _layernorm(x, axis=-1, eps=1e-5):
    m = x.mean(dim=axis, keepdim=True)
    v = x.var(dim=axis, keepdim=True, unbiased=False)
    return (x - m) / torch.sqrt(v + eps)
def _scatter_add(tgt, idx, src, axis=0):
    return tgt.clone().index_add_(axis, idx, src)
def _segment_sum(src, seg, n):
    out = torch.zeros((n,) + src.shape[1:], dtype=src.dtype)
    return out.index_add_(0, seg, src)
def _pad(x, pw):
    flat = tuple(v for pair in reversed(pw) for v in pair)
    return torch.nn.functional.pad(x, flat)

kernel_name = 'standalone__detection_seg_mask2former__vision'

def setup_inputs():

    _w = (lambda a: (lambda t: t.to(torch.bfloat16) if t.is_floating_point() else t)(torch.as_tensor(a)))
    H = W = 512
    C = 192
    Hc, Wc = H // 2, W // 2
    nh = 4
    Nq = 16
    sc = C ** -0.5
    return {
        "q": _w((lambda *s: torch.randn(*s, dtype=torch.bfloat16) * 0.4)(1, Nq, C)),
        "f_hi": _w((lambda *s: torch.randn(*s, dtype=torch.bfloat16) * 0.4)(1, H, W, C)),
        "f_lo": _w((lambda *s: torch.randn(*s, dtype=torch.bfloat16) * 0.4)(1, Hc, Wc, C)),
        "w_lat": _w((lambda *s: torch.randn(*s, dtype=torch.bfloat16) * 0.4)(C, C) * sc),
        "w_q": _w((lambda *s: torch.randn(*s, dtype=torch.bfloat16) * 3.2)(nh, C, C // nh) * sc),
        "w_k": _w((lambda *s: torch.randn(*s, dtype=torch.bfloat16) * 3.2)(nh, C, C // nh) * sc),
        "w_v": _w((lambda *s: torch.randn(*s, dtype=torch.bfloat16) * 3.2)(nh, C, C // nh) * sc),
        "w_o": _w((lambda *s: torch.randn(*s, dtype=torch.bfloat16) * 3.2)(C, C) * sc),
        "w_m": _w((lambda *s: torch.randn(*s, dtype=torch.bfloat16) * 3.2)(C, C) * sc),
    }

def reference(q, f_hi, f_lo, w_lat, w_q, w_k, w_v, w_o, w_m):
    B, Nq, C = q.shape
    _, H, W, _ = f_hi.shape
    nh = w_q.shape[0]
    dh = C // nh
    up = (lambda x, n, axis: torch.repeat_interleave(x, n, dim=axis))((lambda x, n, axis: torch.repeat_interleave(x, n, dim=axis))(f_lo, 2, axis=1), 2, axis=2)
    feat = f_hi + up @ w_lat
    feat = _layernorm(feat, axis=-1)
    kv = feat.reshape(B, H * W, C)
    m_embed = q @ w_m
    mask_bias = torch.einsum('bqc,bkc->bqk', m_embed, kv) * (C ** -0.5)
    Q = torch.einsum('bqc,hcd->bhqd', q, w_q)
    K = torch.einsum('bkc,hcd->bhkd', kv, w_k)
    V = torch.einsum('bkc,hcd->bhkd', kv, w_v)
    logits = torch.einsum('bhqd,bhkd->bhqk', Q, K) * (dh ** -0.5)
    logits = logits + mask_bias[:, None, :, :]
    attn = _softmax(logits, axis=-1)
    ctx = torch.einsum('bhqk,bhkd->bqhd', attn, V).reshape(B, Nq, C)
    return q + ctx @ w_o
```

```python
NAME = 'standalone__detection_seg_mask2former__vision'
class Asm:
    def __init__(self):
        self.L = []
    def __call__(self, s=''):
        for line in s.split('\n'):
            self.L.append(line)
    def text(self):
        return '\n'.join(self.L) + '\n'
def header(launches):
    out = []
    if len(launches) == 1 and launches[0][0] is None:
        _, g, b, lds = launches[0]
        out.append(f'; @launch grid=({g},1,1) block=({b},1,1) lds={lds}')
    else:
        for k, g, b, lds in launches:
            out.append(f'; @launch kernel={k} grid=({g},1,1) block=({b},1,1) lds={lds}')
    out.append('.amdgcn_target "amdgcn-amd-amdhsa--gfx950"')
    out.append('.text')
    return '\n'.join(out)
def kstart(name):
    return f'.globl {name}\n.p2align 8\n.type {name},@function\n{name}:'
def kdesc(name, vgpr, accum=None, sgpr=102):
    if accum is None: accum = (vgpr + 3) // 4 * 4
    return f'''.section .rodata,"a"
.p2align 6
.amdhsa_kernel {name}
  .amdhsa_next_free_vgpr {vgpr}
  .amdhsa_next_free_sgpr {sgpr}
  .amdhsa_accum_offset {accum}
  .amdhsa_group_segment_fixed_size 0
  .amdhsa_kernarg_size 96
  .amdhsa_user_sgpr_count 2
  .amdhsa_user_sgpr_kernarg_segment_ptr 1
  .amdhsa_system_sgpr_workgroup_id_x 1
  .amdhsa_float_denorm_mode_32 3
.end_amdhsa_kernel'''
```

```python
import sys, math
from asmlib import *

WS_A = 0
WS_WL = 24576
WS_WV = 98304
WS_PART = 262144
WS_ML = WS_PART + 16 * 256 * 384
WS_DBG = 8 << 20
WS_BYTES = 402653184
LOG2E = 1.4426950408889634

def f2u(x):
    import struct
    return struct.unpack('<I', struct.pack('<f', x))[0]
def vr(b, n=4): return f'v[{b}:{b+n-1}]'
def srd(a, d, b, size):
    a(f's_mov_b32 s{d}, s{b}\ns_mov_b32 s{d+1}, s{b+1}\ns_mov_b32 s{d+2}, {size}\ns_mov_b32 s{d+3}, 0x20000')

def gen_prep(a):
    K = 'prep_kernel'
    a(kstart(K))
    a('s_cmp_ge_u32 s2, 192\ns_cbranch_scc1 P_end')
    a('s_load_dwordx2 s[4:5], s[0:1], 0')
    a('s_load_dwordx4 s[8:11], s[0:1], 24')
    a('s_load_dwordx4 s[12:15], s[0:1], 40')
    a('s_load_dwordx2 s[16:17], s[0:1], 64')
    a('s_load_dwordx2 s[18:19], s[0:1], 88')
    a('v_and_b32 v1, 15, v0\nv_lshrrev_b32 v2, 4, v0')
    a('v_lshlrev_b32 v3, 4, v0')
    a('s_waitcnt lgkmcnt(0)')
    srd(a, 20, 4, 6144); srd(a, 24, 8, 73728); srd(a, 28, 10, 73728); srd(a, 32, 12, 73728)
    srd(a, 36, 14, 73728); srd(a, 40, 16, 73728); srd(a, 44, 18, WS_BYTES)
    a('v_mul_u32_u24 v4, 3072, v2\nv_lshl_add_u32 v4, v1, 1, v4')
    a('v_mul_u32_u24 v5, 768, v2\nv_lshl_add_u32 v5, v1, 1, v5')
    a('s_cmp_ge_u32 s2, 144\ns_cbranch_scc1 P_taskA')
    a('s_cmp_ge_u32 s2, 72\ns_cbranch_scc1 P_taskV')
    def decode18(k):
        a(f's_mul_i32 s50, {k}, 3641\ns_lshr_b32 s50, s50, 16')
        a(f's_mul_i32 s53, s50, 18\ns_sub_u32 s53, {k}, s53')
        a('s_mul_i32 s51, s53, 10923\ns_lshr_b32 s51, s51, 16')
        a('s_mul_i32 s52, s51, 6\ns_sub_u32 s52, s53, s52')
    def gather8(dst, tmp, voff, srdr, soff, imms):
        for i in range(8):
            a(f'buffer_load_ushort v{tmp+i}, {voff}, {srdr}, {soff} offen offset:{imms[i]}')
    def pack8(dst, tmp):
        for e in range(4):
            a(f'v_lshl_or_b32 v{dst+e}, v{tmp+2*e+1}, 16, v{tmp+2*e}')
    decode18('s2')
    a('s_mul_i32 s54, s52, 12288\ns_mul_i32 s55, s50, 96\ns_add_u32 s54, s54, s55\ns_lshl_b32 s55, s51, 5\ns_add_u32 s54, s54, s55')
    gather8(8, 16, 'v4', 's[24:27]', 's54', [i * 384 for i in range(8)])
    a('s_waitcnt vmcnt(0)')
    pack8(8, 16)
    a(f's_lshl_b32 s56, s2, 10\ns_add_u32 s56, s56, {WS_WL}')
    a('buffer_store_dwordx4 v[8:11], v3, s[44:47], s56 offen')
    a('s_endpgm')
    a('P_taskV:')
    a('s_sub_u32 s57, s2, 72')
    decode18('s57')
    a('v_and_b32 v6, 1, v2\nv_lshrrev_b32 v7, 1, v2\nv_mul_u32_u24 v6, 1536, v6\nv_mul_u32_u24 v7, 384, v7\nv_add_u32 v6, v6, v7\nv_lshl_add_u32 v6, v1, 1, v6')
    a('s_mul_i32 s54, s50, 18432\ns_mul_i32 s55, s52, 3072\ns_add_u32 s54, s54, s55\ns_lshl_b32 s55, s51, 5\ns_add_u32 s54, s54, s55')
    gather8(8, 16, 'v6', 's[36:39]', 's54', [(8 * (i >> 2) + (i & 3)) * 96 for i in range(8)])
    a('s_waitcnt vmcnt(0)')
    pack8(8, 16)
    a(f's_lshl_b32 s56, s57, 10\ns_add_u32 s56, s56, {WS_WV}')
    a('buffer_store_dwordx4 v[8:11], v3, s[44:47], s56 offen')
    a('s_endpgm')
    a('P_taskA:')
    a('s_sub_u32 s57, s2, 144')
    a('s_mul_i32 s50, s57, 5462\ns_lshr_b32 s50, s50, 16')
    a('s_mul_i32 s51, s50, 12\ns_sub_u32 s51, s57, s51')
    a('v_mul_u32_u24 v6, 384, v1\nv_lshl_add_u32 v6, v2, 4, v6')
    for s in range(6):
        a(f'buffer_load_dwordx4 {vr(8+4*s)}, v6, s[20:23], 0 offen offset:{64*s}')
    a('v_mul_u32_u24 v7, 96, v1\nv_lshl_add_u32 v7, v2, 3, v7')
    a('s_mul_i32 s58, s50, 18432\ns_mul_i32 s55, s51, 1536\ns_add_u32 s54, s58, s55')
    for T in range(3):
        a(f'buffer_load_dwordx2 {vr(32+2*T,2)}, v7, s[32:35], s54 offen offset:{32*T}')
    TMP = 64
    for T in range(3):
        for s in range(6):
            a(f's_add_u32 s54, s58, {s*3072 + 32*T}')
            gather8(0, TMP + 48 * T + 8 * s, 'v5', 's[28:31]', 's54', [i * 96 for i in range(8)])
    for s in range(6):
        a(f's_lshl_b32 s54, s51, 5\ns_add_u32 s54, s54, {s*12288}')
        gather8(0, TMP + 144 + 8 * s, 'v4', 's[40:43]', 's54', [i * 384 for i in range(8)])
    a('s_waitcnt vmcnt(0)')
    for T in range(4):
        for s in range(6):
            b = TMP + 48 * T + 8 * s
            pack8(b, b)
    a('s_nop 1')
    for s in range(6):
        for T in range(4):
            b = TMP + 48 * T + 8 * s
            c = '0' if s == 0 else vr(40 + 4 * T)
            a(f'v_mfma_f32_16x16x32_bf16 {vr(40+4*T)}, {vr(b)}, {vr(8+4*s)}, {c}')
    a('s_nop 7\ns_nop 7')
    for T in range(3):
        a(f'v_cvt_pk_bf16_f32 v{56+2*T}, v{40+4*T}, v{41+4*T}')
        a(f'v_cvt_pk_bf16_f32 v{57+2*T}, v{42+4*T}, v{43+4*T}')
    a('v_cvt_pk_bf16_f32 v62, v52, v53\nv_cvt_pk_bf16_f32 v63, v54, v55')
    a('v_lshlrev_b32 v52, 16, v62\nv_and_b32 v53, 0xffff0000, v62\nv_lshlrev_b32 v54, 16, v63\nv_and_b32 v55, 0xffff0000, v63')
    a('s_nop 1')
    a('v_mfma_f32_16x16x32_bf16 v[40:43], v[32:35], v[56:59], 0')
    a('s_nop 7\ns_nop 7')
    a('v_mfma_f32_16x16x16_bf16 v[44:47], v[36:37], v[60:61], 0')
    a('s_nop 7\ns_nop 7')
    a(f's_mov_b32 s60, {f2u(LOG2E * 48 ** -0.5):#x}\ns_mov_b32 s61, {f2u(LOG2E * 192 ** -0.5):#x}')
    for r in range(4):
        a(f'v_add_f32 v{40+r}, v{40+r}, v{44+r}')
        a(f'v_mul_f32 v{52+r}, s61, v{52+r}')
        a(f'v_fma_f32 v{40+r}, v{40+r}, s60, v{52+r}')
    a('v_cvt_pk_bf16_f32 v44, v40, v41\nv_cvt_pk_bf16_f32 v45, v42, v43')
    a('v_lshrrev_b32 v6, 1, v2\nv_lshlrev_b32 v6, 9, v6\nv_lshl_add_u32 v6, v1, 4, v6\nv_and_b32 v7, 1, v2\nv_lshl_add_u32 v6, v7, 3, v6')
    a('s_lshr_b32 s54, s50, 1\ns_mul_i32 s54, s54, 12\ns_add_u32 s54, s54, s51\ns_lshl_b32 s54, s54, 10')
    a(f's_and_b32 s55, s50, 1\ns_lshl_b32 s55, s55, 8\ns_add_u32 s54, s54, s55\ns_add_u32 s54, s54, {WS_A}')
    a('buffer_store_dwordx2 v[44:45], v6, s[44:47], s54 offen')
    a('P_end:\ns_endpgm')

KV0, KV1 = 0, 24576
LAT0, LAT1 = 49152, 61440
FLO = 73728
NF = 4
OB = 98304
MLB = 147456
LDS_MAIN = 149504
THR = 32.0
OOB = 0x10000000

def gen_main(a, ldflag='nt', dbg=False):
    K = 'main_kernel'
    a(kstart(K))
    a('s_cmp_ge_u32 s2, 256\ns_cbranch_scc1 M_end')
    a('s_load_dwordx4 s[4:7], s[0:1], 8')
    a('s_load_dwordx2 s[16:17], s[0:1], 88')
    a('v_lshrrev_b32 v1, 6, v0\nv_and_b32 v0, 63, v0\nv_readfirstlane_b32 s24, v1')
    a('s_waitcnt lgkmcnt(0)')
    srd(a, 8, 4, 100663296); srd(a, 12, 6, 25165824); srd(a, 20, 16, WS_BYTES)
    a('s_cmp_ge_u32 s24, 4\ns_cbranch_scc1 M_cons')
    gen_prod(a, ldflag, dbg)
    a('M_cons:')
    gen_cons(a, ldflag, dbg)
    a('M_end:\ns_endpgm')

def gen_prod(a, ldflag, dbg):
    WL = 0
    F = 72
    X = 144
    B = 192
    D = 216
    vG, vFl0, vFl1, vLw0, vLw1, vLw2, vLr0, vLr1, vKw0, vKw1 = range(228, 238)
    SA0, SQ0, SA1, SQ1 = 238, 240, 242, 244
    RN0, RN1 = 246, 248
    T0, T1, T2, T3, VL = 250, 251, 252, 253, 254
    a(f'v_mov_b32 v{VL}, v0')
    a('s_mul_i32 s25, s2, 393216\ns_lshr_b32 s28, s24, 1\ns_mul_i32 s28, s28, 196608\ns_add_u32 s25, s25, s28')
    a('s_and_b32 s29, s24, 1\ns_mul_i32 s28, s29, 6144\ns_add_u32 s25, s25, s28')
    a(f'v_lshrrev_b32 v{T0}, 3, v{VL}\nv_and_b32 v{T1}, 7, v{VL}')
    a(f'v_mul_u32_u24 v{vG}, 384, v{T0}\nv_lshl_add_u32 v{vG}, v{T1}, 4, v{vG}')
    def fload(slot, idx, soff):
        u, t = idx // 3, idx % 3
        a(f'buffer_load_dwordx4 {vr(F+slot*24+idx*4)}, v{vG}, s[8:11], {soff} offen offset:{u*3072+t*128} {ldflag}')
    for i in range(6): fload(0, i, 's25')
    a(f'v_lshlrev_b32 v{T2}, 4, v{VL}')
    a(f's_mul_i32 s30, s24, 18432\ns_add_u32 s30, s30, {WS_WL}')
    for k in range(18):
        if k and k % 4 == 0: a('s_add_u32 s30, s30, 4096')
        a(f'buffer_load_dwordx4 {vr(WL+4*k)}, v{T2}, s[20:23], s30 offen offset:{(k%4)*1024}')
    a('s_add_u32 s26, s25, 12288')
    for i in range(6): fload(1, i, 's26')
    a('s_add_u32 s26, s26, 12288')
    for i in range(6): fload(2, i, 's26')
    a('s_add_u32 s26, s26, 12288')
    a(f'v_and_b32 v{T2}, 15, v{VL}\nv_lshrrev_b32 v{T3}, 4, v{VL}')
    a(f'v_and_b32 v{vFl0}, 6, v{T2}\nv_xor_b32 v{vFl0}, v{vFl0}, v{T3}\nv_lshlrev_b32 v{vFl0}, 4, v{vFl0}')
    a(f'v_mul_u32_u24 v{vFl1}, 384, v{T2}\nv_add_u32 v{vFl1}, {FLO}, v{vFl1}')
    a(f'v_xor_b32 v{SA0}, 64, v{vFl0}\nv_add_u32 v{vFl0}, v{vFl0}, v{vFl1}\nv_add_u32 v{vFl1}, v{SA0}, v{vFl1}')
    a(f'v_and_b32 v{SA0}, 1, v{T3}\nv_mul_u32_u24 v{SA0}, 6144, v{SA0}\nv_mul_u32_u24 v{SA0+1}, 384, v{T2}\nv_add_u32 v{SA0}, v{SA0}, v{SA0+1}\nv_add_u32 v{SA0}, {LAT0}, v{SA0}')
    a(f'v_lshrrev_b32 v{SQ0}, 1, v{T3}\ns_mul_i32 s31, s24, 6\nv_add_u32 v{SQ0}, s31, v{SQ0}')
    a(f'v_and_b32 v{SQ0+1}, 7, v{T2}')
    for T, rr in enumerate((vLw0, vLw1, vLw2)):
        a(f'v_add_u32 v{SA1}, {2*T}, v{SQ0}')
        a(f'v_lshrrev_b32 v{SA1+1}, 3, v{SA1}\nv_lshlrev_b32 v{SA1+1}, 7, v{SA1+1}')
        a(f'v_and_b32 v{SA1}, 7, v{SA1}\nv_xor_b32 v{SA1}, v{SA1}, v{SQ0+1}\nv_lshl_add_u32 v{SA1}, v{SA1}, 4, v{SA1+1}')
        a(f'v_add_u32 v{rr}, v{SA1}, v{SA0}')
    a(f's_mul_i32 s31, s29, 3072\ns_add_u32 s31, s31, {LAT0}')
    a(f'v_mul_u32_u24 v{SA0}, 384, v{T3}\nv_add_u32 v{SA0}, s31, v{SA0}')
    a(f'v_xor_b32 v{SA1}, v{T1}, v{T3}\nv_lshlrev_b32 v{SA1}, 4, v{SA1}')
    a(f'v_add_u32 v{vLr0}, v{SA0}, v{SA1}')
    a(f'v_xor_b32 v{SA1}, 64, v{SA1}\nv_add_u32 v{vLr1}, v{SA0}, v{SA1}\nv_add_u32 v{vLr1}, 1536, v{vLr1}')
    a(f'v_and_b32 v{SA0}, 1, v{T3}\nv_lshlrev_b32 v{SA0}, 2, v{SA0}\nv_lshrrev_b32 v{SA0+1}, 5, v{VL}\nv_or_b32 v{SA0}, v{SA0}, v{SA0+1}')
    a(f'v_xor_b32 v{SA0}, v{SA0}, v{T1}\nv_lshlrev_b32 v{SA0}, 4, v{SA0}')
    a(f's_mul_i32 s31, s24, 6144\ns_add_u32 s31, s31, {KV0}')
    a(f'v_mul_u32_u24 v{SA1}, 384, v{T0}\nv_add_u32 v{SA1}, s31, v{SA1}')
    a(f'v_add_u32 v{vKw0}, v{SA0}, v{SA1}')
    a(f'v_xor_b32 v{SA0}, 32, v{SA0}\nv_add_u32 v{vKw1}, v{SA0}, v{SA1}\nv_add_u32 v{vKw1}, 3072, v{vKw1}')
    a('s_mov_b32 s32, 0x00003f80\ns_mov_b32 s33, 0x3f800000')
    a(f's_mov_b32 s34, {f2u(1.0/192):#x}\ns_mov_b32 s35, {f2u(1e-5):#x}')
    a(f's_mov_b32 s36, {LAT1-LAT0}\ns_mov_b32 s37, {KV1-KV0}')
    a('s_mov_b32 s38, 0\ns_movk_i32 s46, 6144')
    a('s_mov_b32 s27, 0')
    if dbg:
        a(f's_mul_i32 s39, s2, 393216\ns_mul_i32 s31, s24, 6144\ns_add_u32 s39, s39, s31\ns_add_u32 s39, s39, {WS_DBG}')
    def flo_reads():
        for s in range(6):
            a(f'ds_read_b128 {vr(B+4*s)}, v{vFl1 if s&1 else vFl0} offset:{(s>>1)*128}')
    def mfma(s, T):
        c = '0' if s == 0 else vr(D + 4 * T)
        return f'v_mfma_f32_16x16x32_bf16 {vr(D+4*T)}, {vr(WL+(T*6+s)*4)}, {vr(B+4*s)}, {c}'
    def lat_writes():
        for T, rr in enumerate((vLw0, vLw1, vLw2)):
            a(f'ds_write_b128 v{rr}, {vr(D+4*T)}')
    def flo_advance():
        a(f's_add_u32 s38, s38, 1\ns_and_b32 s38, s38, {NF-1}\ns_cmp_eq_u32 s38, 0\ns_cselect_b32 s31, {(-(NF-1)*6144) & 0xffffffff:#x}, s46')
        a(f'v_add_u32 v{vFl0}, s31, v{vFl0}\nv_add_u32 v{vFl1}, s31, v{vFl1}')
    a('s_barrier')
    flo_reads()
    a('s_waitcnt vmcnt(12) lgkmcnt(0)')
    for s in range(6):
        for T in range(3): a(mfma(s, T))
    flo_advance()
    a('s_nop 7')
    lat_writes()
    for rr in (vLw0, vLw1, vLw2): a(f'v_add_u32 v{rr}, s36, v{rr}')
    a('s_waitcnt lgkmcnt(0)\ns_barrier')
    def xread(u, t, hh):
        return f'ds_read_b128 {vr(X+(u*3+t)*8+4*hh)}, v{vLr1 if u else vLr0} offset:{hh*6144+t*128}'
    def dots(slot, u):
        out = []
        for t in range(3):
            for e in range(4):
                fr = F + slot * 24 + (u * 3 + t) * 4 + e
                xb = X + (u * 3 + t) * 8 + 2 * e
                out.append(f'v_dot2c_f32_bf16 v{xb}, s32, v{fr}')
                out.append(f'v_dot2c_f32_bf16 v{xb+1}, s33, v{fr}')
        return out
    def subphase(slot):
        flo_reads()
        for t in range(3):
            for hh in range(2): a(xread(0, t, hh))
        a('s_waitcnt lgkmcnt(6)')
        ms = [mfma(s, T) for s in range(6) for T in range(3)]
        xr = [xread(1, t, hh) for t in range(3) for hh in range(2)]
        for i in range(3):
            a(ms[i]); a(xr[2 * i]); a(xr[2 * i + 1])
        a(f's_add_u32 s40, s27, 3\ns_cmp_lt_u32 s40, 16\ns_cselect_b32 s41, s26, {OOB:#x}\ns_add_u32 s26, s26, 12288')
        a('s_waitcnt vmcnt(15) lgkmcnt(6)')
        d0 = dots(slot, 0); d1 = dots(slot, 1)
        for i in range(12):
            a(ms[3 + i]); a(d0[2 * i]); a(d0[2 * i + 1])
        for i in range(3): fload(slot, i, 's41')
        a('s_waitcnt vmcnt(15) lgkmcnt(0)')
        for i in range(3):
            a(ms[15 + i]); a(d1[2 * i]); a(d1[2 * i + 1])
        for x in d1[6:16]: a(x)
        lat_writes()
        for x in d1[16:]: a(x)
        for i in range(3, 6): fload(slot, i, 's41')
        for k in range(12):
            for u, (sa, sq) in enumerate(((SA0, SQ0), (SA1, SQ1))):
                xb = X + u * 24 + 2 * k
                if k == 0:
                    a(f'v_pk_mul_f32 {vr(sq,2)}, {vr(xb,2)}, {vr(xb,2)}')
                elif k == 1:
                    a(f'v_pk_add_f32 {vr(sa,2)}, {vr(xb-2,2)}, {vr(xb,2)}')
                    a(f'v_pk_fma_f32 {vr(sq,2)}, {vr(xb,2)}, {vr(xb,2)}, {vr(sq,2)}')
                else:
                    a(f'v_pk_add_f32 {vr(sa,2)}, {vr(sa,2)}, {vr(xb,2)}')
                    a(f'v_pk_fma_f32 {vr(sq,2)}, {vr(xb,2)}, {vr(xb,2)}, {vr(sq,2)}')
        ch = (SA0, SQ0, SA1, SQ1)
        for r in ch: a(f'v_add_f32 v{r}, v{r}, v{r+1}')
        for pat in ('quad_perm:[1,0,3,2]', 'quad_perm:[2,3,0,1]', 'row_half_mirror'):
            for r in ch: a(f'v_add_f32_dpp v{r}, v{r}, v{r} {pat} row_mask:0xf bank_mask:0xf')
        a(f's_sub_u32 s31, 0, s36')
        for rr in (vLw0, vLw1, vLw2): a(f'v_add_u32 v{rr}, s31, v{rr}')
        for rr in (vLr0, vLr1): a(f'v_add_u32 v{rr}, s36, v{rr}')
        a('s_mov_b32 s36, s31')
        flo_advance()
        for (sa, sq, rn) in ((SA0, SQ0, RN0), (SA1, SQ1, RN1)):
            a(f'v_mul_f32 v{sa}, s34, v{sa}')
        for (sa, sq, rn) in ((SA0, SQ0, RN0), (SA1, SQ1, RN1)):
            a(f'v_mul_f32 v{sa+1}, v{sa}, v{sa}')
        for (sa, sq, rn) in ((SA0, SQ0, RN0), (SA1, SQ1, RN1)):
            a(f'v_fma_f32 v{sq}, v{sq}, s34, -v{sa+1}')
        for (sa, sq, rn) in ((SA0, SQ0, RN0), (SA1, SQ1, RN1)):
            a(f'v_max_f32 v{sq}, 0, v{sq}')
        for (sa, sq, rn) in ((SA0, SQ0, RN0), (SA1, SQ1, RN1)):
            a(f'v_add_f32 v{sq}, s35, v{sq}')
        for (sa, sq, rn) in ((SA0, SQ0, RN0), (SA1, SQ1, RN1)):
            a(f'v_rsq_f32 v{rn}, v{sq}')
        a('s_nop 0')
        for (sa, sq, rn) in ((SA0, SQ0, RN0), (SA1, SQ1, RN1)):
            a(f'v_mul_f32 v{rn+1}, -v{sa}, v{rn}')
        for u, rn in enumerate((RN0, RN1)):
            for t in range(3):
                xb = X + (u * 3 + t) * 8
                for e in range(4):
                    a(f'v_pk_fma_f32 {vr(xb+2*e,2)}, {vr(xb+2*e,2)}, {vr(rn,2)}, {vr(rn,2)} op_sel:[0,0,1] op_sel_hi:[1,0,1]')
                for e in range(4):
                    a(f'v_cvt_pk_bf16_f32 v{xb+e}, v{xb+2*e}, v{xb+2*e+1}')
                a(f'ds_write_b128 v{vKw1 if u else vKw0}, {vr(xb)} offset:{t*128}')
                if dbg:
                    a(f'buffer_store_dwordx4 {vr(xb)}, v{vG}, s[20:23], s39 offen offset:{u*3072+t*128}')
        if dbg:
            a('s_add_u32 s39, s39, 24576\ns_waitcnt vmcnt(0)')
        for rr in (vKw0, vKw1): a(f'v_add_u32 v{rr}, s37, v{rr}')
        a('s_sub_u32 s37, 0, s37')
        a('s_add_u32 s27, s27, 1')
        a('s_waitcnt lgkmcnt(0)\ns_barrier')
    a('PL_loop:')
    subphase(0)
    a('s_cmp_eq_u32 s27, 16\ns_cbranch_scc1 PL_done')
    subphase(1)
    subphase(2)
    a('s_branch PL_loop')
    a('PL_done:')
    a(f'v_lshlrev_b32 v{T2}, 4, v{VL}')
    a(f's_mul_i32 s30, s24, 18432\ns_add_u32 s30, s30, {WS_WV}')
    for k in range(18):
        if k and k % 4 == 0: a('s_add_u32 s30, s30, 4096')
        a(f'buffer_load_dwordx4 {vr(WL+4*k)}, v{T2}, s[20:23], s30 offen offset:{(k%4)*1024}')
    a(f's_mul_i32 s31, s24, 6144\ns_add_u32 s31, s31, {OB}\nv_add_u32 v{T2}, s31, v{T2}')
    a(f'v_and_b32 v{T0}, 15, v{VL}\nv_lshrrev_b32 v{T3}, 4, v{VL}')
    a(f's_lshl_b32 s31, s24, 9\ns_add_u32 s31, s31, {MLB}\nv_lshl_add_u32 v{T1}, v{T0}, 5, s31')
    a(f'v_mul_u32_u24 v{vFl0}, 98304, v{T0}\nv_lshl_add_u32 v{vFl0}, v{T3}, 3, v{vFl0}')
    a(f's_mul_i32 s42, s2, 384\ns_mul_i32 s31, s24, 96\ns_add_u32 s42, s42, s31\ns_add_u32 s42, s42, {WS_PART}')
    a(f'v_lshlrev_b32 v{vFl1}, 13, v{T0}')
    a(f's_lshl_b32 s43, s2, 5\ns_lshl_b32 s31, s24, 3\ns_add_u32 s43, s43, s31\ns_add_u32 s43, s43, {WS_ML}')
    a('s_barrier')
    OF = 72
    ML = 120
    DD = 128
    a(f'ds_read_b128 {vr(ML)}, v{T1}\nds_read_b128 {vr(ML+4)}, v{T1} offset:16')
    for ks in range(2):
        for ct in range(6):
            a(f'ds_read_b128 {vr(OF+(ks*6+ct)*4)}, v{T2} offset:{ks*24576+ct*1024}')
    a('s_waitcnt vmcnt(0) lgkmcnt(0)')
    for ct in range(6):
        for ks in range(2):
            for T in range(3):
                d = DD + (ks * 3 + T) * 4
                c = '0' if ct == 0 else vr(d)
                a(f'v_mfma_f32_16x16x32_bf16 {vr(d)}, {vr(WL+(T*6+ct)*4)}, {vr(OF+(ks*6+ct)*4)}, {c}')
    M, F0, F1, L = 152, 153, 154, 155
    a(f'v_max_f32 v156, v{ML}, v{ML+4}')
    a(f'v_sub_f32 v{F0}, v{ML}, v156\nv_sub_f32 v{F1}, v{ML+4}, v156')
    a(f'v_exp_f32 v{F0}, v{F0}\nv_exp_f32 v{F1}, v{F1}')
    a(f'v_add_f32 v{ML+1}, v{ML+1}, v{ML+3}\nv_add_f32 v{ML+5}, v{ML+5}, v{ML+7}')
    a(f'v_mul_f32 v157, v{F0}, v{ML+1}\nv_fma_f32 v157, v{F1}, v{ML+5}, v157')
    a(f'v_rcp_f32 v{L}, v157\ns_nop 0')
    a(f'v_mul_f32 v{F0}, v{F0}, v{L}\nv_mul_f32 v{F1}, v{F1}, v{L}')
    a('s_nop 7')
    for T in range(3):
        for r in range(4):
            a(f'v_mul_f32 v{DD+T*4+r}, v{DD+T*4+r}, v{F0}')
            a(f'v_fma_f32 v{DD+T*4+r}, v{DD+12+T*4+r}, v{F1}, v{DD+T*4+r}')
        a(f'v_cvt_pk_bf16_f32 v{160+2*T}, v{DD+T*4}, v{DD+T*4+1}\nv_cvt_pk_bf16_f32 v{161+2*T}, v{DD+T*4+2}, v{DD+T*4+3}')
        a(f'buffer_store_dwordx2 {vr(160+2*T,2)}, v{vFl0}, s[20:23], s42 offen offset:{32*T}')
    a(f'v_cmp_gt_u32 vcc, 16, v{VL}\ns_and_saveexec_b64 s[44:45], vcc')
    a(f'buffer_store_dwordx2 v[156:157], v{vFl1}, s[20:23], s43 offen')
    a('s_endpgm')

def gen_cons(a, ldflag, dbg):
    O = 0; AF = 96; NM = 144; S = 160; P = 176; KF = 184
    aS = [232, 233, 234, 235]; aT = [236, 237, 238, 239]
    vDma = 240; LA = 242; T0, T1, T2, T3, VL = 244, 245, 246, 247, 248
    a(f'v_mov_b32 v{VL}, v0')
    a('s_sub_u32 s25, s24, 4')
    a('s_and_b32 s26, s25, 1\ns_lshr_b32 s27, s25, 1')
    a(f's_lshl_b32 s28, s25, 6\nv_add_u32 v{T0}, s28, v{VL}')
    a(f'v_mul_u32_u24 v{T1}, 2731, v{T0}\nv_lshrrev_b32 v{T1}, 16, v{T1}')
    a(f'v_mul_u32_u24 v{T2}, 24, v{T1}\nv_sub_u32 v{T2}, v{T0}, v{T2}')
    a(f'v_and_b32 v{T3}, 6, v{T1}\nv_xor_b32 v{T2}, v{T2}, v{T3}')
    a(f'v_mul_u32_u24 v{vDma}, 384, v{T1}\nv_lshl_add_u32 v{vDma}, v{T2}, 4, v{vDma}')
    a('s_mul_i32 s29, s2, 98304')
    a(f's_lshl_b32 s30, s25, 10\ns_add_u32 s30, s30, {FLO}')
    a('s_mov_b32 s31, 0')
    def dma():
        lbl = f'C_nodma{dma.n}'; dma.n += 1
        a(f's_cmp_eq_u32 s25, 3\ns_cbranch_scc1 {lbl}')
        a(f's_and_b32 s32, s31, {NF-1}\ns_mul_i32 s32, s32, 6144\ns_add_u32 s32, s32, s30\ns_mov_b32 m0, s32')
        a(f's_cmp_lt_u32 s31, 16\ns_cselect_b32 s33, s29, {OOB:#x}')
        a(f'buffer_load_dwordx4 v{vDma}, s[12:15], s33 offen {ldflag} lds')
        a(f'buffer_load_dwordx4 v{vDma}, s[12:15], s33 offen offset:3072 {ldflag} lds')
        a(f'{lbl}:')
        a('s_add_u32 s29, s29, 6144\ns_add_u32 s31, s31, 1')
    dma.n = 0
    for i in range(NF - 1): dma()
    a(f'v_lshlrev_b32 v{T0}, 4, v{VL}')
    a(f's_mul_i32 s34, s26, 12288\ns_add_u32 s34, s34, {WS_A}')
    for s in range(12):
        if s and s % 4 == 0: a('s_add_u32 s34, s34, 4096')
        a(f'buffer_load_dwordx4 {vr(AF+4*s)}, v{T0}, s[20:23], s34 offen offset:{(s%4)*1024}')
    a(f'v_and_b32 v{T0}, 31, v{VL}\nv_lshrrev_b32 v{T1}, 5, v{VL}')
    a(f'v_and_b32 v{T2}, 2, v{T0}\nv_lshlrev_b32 v{T2}, 1, v{T2}\nv_bfe_u32 v{T3}, v{T0}, 2, 2\nv_or_b32 v{T2}, v{T2}, v{T3}\nv_xor_b32 v{T2}, v{T2}, v{T1}\nv_lshlrev_b32 v{T2}, 4, v{T2}')
    a(f's_mul_i32 s35, s27, 12288')
    a(f'v_mul_u32_u24 v{T3}, 384, v{T0}\nv_add_u32 v{T3}, s35, v{T3}')
    for k in range(4):
        a(f'v_xor_b32 v{aS[k]}, {32*k}, v{T2}\nv_add_u32 v{aS[k]}, v{aS[k]}, v{T3}')
    a(f'v_bfe_u32 v{T0}, v{VL}, 4, 1\nv_lshlrev_b32 v{T0}, 1, v{T0}\nv_bfe_u32 v{T2}, v{VL}, 1, 1\nv_or_b32 v{T0}, v{T0}, v{T2}')
    a(f'v_bfe_u32 v{T2}, v{VL}, 3, 1\nv_lshlrev_b32 v{T2}, 2, v{T2}\nv_or_b32 v{T2}, v{T2}, v{T1}\nv_xor_b32 v{T0}, v{T0}, v{T2}\nv_lshlrev_b32 v{T0}, 4, v{T0}')
    a(f'v_bfe_u32 v{T2}, v{VL}, 2, 2\nv_lshl_add_u32 v{T2}, v{T1}, 2, v{T2}\nv_mul_u32_u24 v{T2}, 384, v{T2}')
    a(f'v_and_b32 v{T3}, 1, v{VL}\nv_lshl_add_u32 v{T2}, v{T3}, 3, v{T2}\nv_add_u32 v{T2}, s35, v{T2}')
    for k in range(4):
        a(f'v_xor_b32 v{aT[k]}, {32*k}, v{T0}\nv_add_u32 v{aT[k]}, v{aT[k]}, v{T2}')
    for r in range(96): a(f'v_mov_b32 v{O+r}, 0')
    for r in range(16): a(f'v_mov_b32 v{NM+r}, 0')
    a(f'v_mov_b32 v{LA}, 0\nv_mov_b32 v{LA+1}, 0')
    a('s_mov_b32 s36, 0xff800000\ns_mov_b32 s37, 0xff800000')
    a(f's_waitcnt vmcnt({12 + 2*(NF-2)})\ns_barrier')
    dma(); a(f's_waitcnt vmcnt({12 + 2*(NF-2)})\ns_barrier')
    dma(); a(f's_waitcnt vmcnt({2*(NF-2)})')
    a('s_cmp_lg_u32 s25, 3\ns_cbranch_scc1 C_w3\ns_waitcnt vmcnt(0)\nC_w3:\ns_barrier')
    a('s_mov_b32 s38, 0')
    def tile(par, n):
        base = KV1 if par else KV0
        for s in range(12):
            a(f'ds_read_b128 {vr(KF+4*s)}, v{aS[s&3]} offset:{base+(s>>2)*128}')
        dma()
        trs = []
        for u in range(2):
            for ct in range(6):
                for b in range(2):
                    idx = u * 6 + ct
                    trs.append(f'ds_read_b64_tr_b16 {vr(KF+4*idx+2*b,2)}, v{aT[2*(ct&1)+b]} offset:{base+u*6144+b*3072+(ct>>1)*128}')
        for s in range(12):
            if s in (0, 4, 8): a(f's_waitcnt lgkmcnt({8-s})')
            c = vr(NM, 16) if s == 0 else vr(S, 16)
            a(f'v_mfma_f32_32x32x16_bf16 {vr(S,16)}, {vr(KF+4*s)}, {vr(AF+4*s)}, {c}')
            if s >= 8:
                for x in trs[(s - 8) * 4:(s - 8) * 4 + 4]: a(x)
        for x in trs[16:]: a(x)
        a('s_nop 3')
        a(f'v_max3_f32 v{T0}, v{S}, v{S+1}, v{S+2}\nv_max3_f32 v{T1}, v{S+3}, v{S+4}, v{S+5}')
        a(f'v_max3_f32 v{T0}, v{T0}, v{S+6}, v{S+7}\nv_max3_f32 v{T1}, v{T1}, v{S+8}, v{S+9}')
        a(f'v_max3_f32 v{T0}, v{T0}, v{S+10}, v{S+11}\nv_max3_f32 v{T1}, v{T1}, v{S+12}, v{S+13}')
        a(f'v_max3_f32 v{T0}, v{T0}, v{S+14}, v{S+15}\nv_max_f32 v{T0}, v{T0}, v{T1}')
        a(f'v_cmp_lt_f32 vcc, s36, v{T0}')
        a(f's_cbranch_vccz C_norescale{n}')
        a(f'v_mov_b32 v{T1}, v{T0}\ns_nop 1\nv_permlane32_swap_b32 v{T0}, v{T1}\nv_max_f32 v{T0}, v{T0}, v{T1}')
        a(f'v_max_f32 v{T0}, s37, v{T0}')
        a(f'v_max_f32 v{T1}, 0, v{T0}\nv_exp_f32 v{T2}, -v{T1}')
        a(f's_mov_b32 s36, {f2u(THR):#x}\ns_mov_b32 s37, 0')
        for r in range(16): a(f'v_sub_f32 v{S+r}, v{S+r}, v{T0}')
        for r in range(16): a(f'v_sub_f32 v{NM+r}, v{NM+r}, v{T0}')
        for r in range(96): a(f'v_mul_f32 v{O+r}, v{O+r}, v{T2}')
        a(f'v_mul_f32 v{LA}, v{LA}, v{T2}\nv_mul_f32 v{LA+1}, v{LA+1}, v{T2}')
        a(f'C_norescale{n}:')
        for r in range(8): a(f'v_exp_f32 v{S+r}, v{S+r}')
        a('s_nop 0')
        for e in range(4): a(f'v_cvt_pk_bf16_f32 v{P+e}, v{S+2*e}, v{S+2*e+1}')
        a('s_waitcnt lgkmcnt(0)\ns_nop 0')
        fill = [f'v_exp_f32 v{S+r}, v{S+r}' for r in range(8, 16)]
        fill += [f'v_pk_add_f32 {vr(LA,2)}, {vr(LA,2)}, {vr(S+2*e,2)}' for e in range(4)]
        fill += [f'v_cvt_pk_bf16_f32 v{P+e}, v{S+2*e}, v{S+2*e+1}' for e in range(4, 8)]
        fill += [f'v_pk_add_f32 {vr(LA,2)}, {vr(LA,2)}, {vr(S+2*e,2)}' for e in range(4, 8)]
        cnt = [3, 3, 2, 4, 4, 4]
        k = 0
        for ct in range(6):
            a(f'v_mfma_f32_32x32x16_bf16 {vr(O+16*ct,16)}, {vr(KF+4*ct)}, {vr(P)}, {vr(O+16*ct,16)}')
            for x in fill[k:k + cnt[ct]]: a(x)
            k += cnt[ct]
        assert k == len(fill)
        for ct in range(6):
            a(f'v_mfma_f32_32x32x16_bf16 {vr(O+16*ct,16)}, {vr(KF+4*(6+ct))}, {vr(P+4)}, {vr(O+16*ct,16)}')
    a('CL_loop:')
    tile(0, 0)
    a(f's_waitcnt vmcnt({2*(NF-2)})\ns_barrier')
    tile(1, 1)
    a('s_add_u32 s38, s38, 1\ns_cmp_eq_u32 s38, 8\ns_cbranch_scc1 CL_done')
    a(f's_waitcnt vmcnt({2*(NF-2)})\ns_barrier')
    a('s_branch CL_loop')
    a('CL_done:')
    a(f'v_bfe_u32 v{T0}, v{VL}, 4, 1\nv_mul_u32_u24 v{T0}, 6144, v{T0}\nv_lshrrev_b32 v{T1}, 5, v{VL}\nv_lshl_add_u32 v{T0}, v{T1}, 9, v{T0}')
    a(f'v_and_b32 v{T2}, 15, v{VL}\nv_lshl_add_u32 v{T0}, v{T2}, 4, v{T0}')
    a(f's_mul_i32 s39, s27, 24576\ns_mul_i32 s40, s26, 12288\ns_add_u32 s39, s39, s40\ns_add_u32 s39, s39, {OB}\nv_add_u32 v{T0}, s39, v{T0}')
    a(f'v_and_b32 v{T2}, 31, v{VL}\nv_lshlrev_b32 v{T2}, 5, v{T2}\nv_lshl_add_u32 v{T2}, v{T1}, 3, v{T2}')
    a(f's_lshl_b32 s39, s26, 10\ns_lshl_b32 s40, s27, 4\ns_add_u32 s39, s39, s40\ns_add_u32 s39, s39, {MLB}\nv_add_u32 v{T2}, s39, v{T2}')
    a(f'v_add_f32 v{LA+1}, v{LA}, v{LA+1}\nv_sub_f32 v{LA}, 0, v{NM}')
    a(f'ds_write_b64 v{T2}, {vr(LA,2)}')
    for ct in range(6):
        for u in range(2):
            o = O + 16 * ct + 8 * u
            kf = KF + 4 * (2 * ct + u)
            if ct == 0 and u == 0: a('s_nop 7')
            for e in range(4): a(f'v_cvt_pk_bf16_f32 v{kf+e}, v{o+2*e}, v{o+2*e+1}')
            a(f'ds_write_b128 v{T0}, {vr(kf)} offset:{ct*1024+u*256}')
    a('s_waitcnt vmcnt(0) lgkmcnt(0)\ns_barrier')
    a('s_endpgm')

def gen_comb(a):
    K = 'comb_kernel'
    LM = 0
    LL = 512
    LA = 1024
    LC = 25600
    LY = 26368
    a(kstart(K))
    a('s_cmp_ge_u32 s2, 16\ns_cbranch_scc1 C_end')
    a('s_load_dwordx2 s[4:5], s[0:1], 0\ns_load_dwordx2 s[6:7], s[0:1], 56\ns_load_dwordx2 s[8:9], s[0:1], 72\ns_load_dwordx2 s[10:11], s[0:1], 88')
    a('v_mul_u32_u24 v1, 2731, v0\nv_lshrrev_b32 v1, 16, v1')
    a('v_mul_u32_u24 v2, 24, v1\nv_sub_u32 v2, v0, v2')
    a('v_mul_u32_u24 v3, 43, v2\nv_lshrrev_b32 v3, 8, v3')
    a('v_lshlrev_b32 v4, 4, v0')
    a('v_lshlrev_b32 v5, 5, v1\nv_lshl_add_u32 v5, v3, 3, v5')
    a('v_mul_u32_u24 v6, 683, v0\nv_lshrrev_b32 v6, 16, v6')
    a('v_mul_u32_u24 v7, 96, v6\nv_sub_u32 v7, v0, v7')
    a('v_mul_u32_u24 v8, 9216, v6\nv_lshl_add_u32 v8, v7, 2, v8')
    a('s_waitcnt lgkmcnt(0)')
    srd(a, 12, 4, 6144); srd(a, 16, 6, 73728); srd(a, 20, 8, 6144); srd(a, 24, 10, WS_BYTES)
    a(f's_mul_i32 s28, s2, 8192\ns_add_u32 s28, s28, {WS_ML}')
    for k in range(8):
        if k == 4: a('s_add_u32 s28, s28, 4096')
        a(f'buffer_load_dwordx2 {vr(16+2*k,2)}, v5, s[24:27], s28 offen offset:{(k%4)*1024}')
    a(f's_mul_i32 s28, s2, 98304\ns_add_u32 s28, s28, {WS_PART}')
    for k in range(8):
        a(f'buffer_load_dwordx4 {vr(32+4*k)}, v4, s[24:27], s28 offen')
        a('s_add_u32 s28, s28, 12288')
    a('s_mov_b32 s29, 0')
    for k in range(24):
        if k and k % 8 == 0: a('s_add_u32 s29, s29, 3072')
        a(f'buffer_load_dword v{64+k}, v8, s[16:19], s29 offen offset:{(k%8)*384}')
    a('s_mul_i32 s30, s2, 384\nv_lshlrev_b32 v9, 2, v7')
    a('buffer_load_dword v88, v9, s[12:15], s30 offen')
    a('s_waitcnt vmcnt(33)')
    a('v_max3_f32 v10, v16, v18, v20\nv_max3_f32 v10, v10, v22, v24\nv_max3_f32 v10, v10, v26, v28\nv_max_f32 v10, v10, v30')
    a(f'v_lshlrev_b32 v11, 7, v3\nv_lshl_add_u32 v12, v1, 2, v11')
    a(f'ds_write_b32 v12, v10 offset:{LM}')
    a('s_waitcnt lgkmcnt(0)\ns_barrier')
    for k in range(8): a(f'ds_read_b128 {vr(92+4*k)}, v11 offset:{LM+16*k}')
    a('s_waitcnt lgkmcnt(0)')
    a('v_max_f32 v10, v92, v93')
    for k in range(15): a(f'v_max3_f32 v10, v10, v{94+2*k}, v{95+2*k}')
    for k in range(8): a(f'v_sub_f32 v{16+2*k}, v{16+2*k}, v10')
    for k in range(8): a(f'v_exp_f32 v{16+2*k}, v{16+2*k}')
    a('s_nop 0')
    for k in range(8): a(f'v_mul_f32 v{16+2*k}, v{16+2*k}, v{17+2*k}')
    a('v_add_f32 v13, v16, v18')
    for k in range(2, 8): a(f'v_add_f32 v13, v13, v{16+2*k}')
    a(f'ds_write_b32 v12, v13 offset:{LL}')
    for e in range(8): a(f'v_mov_b32 v{92+e}, 0')
    for k in range(8):
        a(f's_waitcnt vmcnt({25 + 7 - k})')
        for e in range(4):
            a(f'v_lshlrev_b32 v14, 16, v{32+4*k+e}\nv_and_b32 v15, 0xffff0000, v{32+4*k+e}')
            a(f'v_fma_f32 v{92+2*e}, v14, v{16+2*k}, v{92+2*e}\nv_fma_f32 v{93+2*e}, v15, v{16+2*k}, v{93+2*e}')
    a('v_lshlrev_b32 v14, 5, v0')
    a(f'ds_write_b128 v14, v[92:95] offset:{LA}\nds_write_b128 v14, v[96:99] offset:{LA+16}')
    a('s_waitcnt lgkmcnt(0)\ns_barrier')
    a('v_cmp_gt_u32 vcc, 192, v0\ns_and_saveexec_b64 s[32:33], vcc\ns_cbranch_execz C_s3done')
    a('v_lshlrev_b32 v14, 2, v0')
    a('v_mul_u32_u24 v15, 1366, v0\nv_lshrrev_b32 v15, 16, v15\nv_lshlrev_b32 v15, 7, v15')
    for k in range(32): a(f'ds_read_b32 v{32+k}, v14 offset:{LA+768*k}')
    for k in range(8): a(f'ds_read_b128 {vr(92+4*k)}, v15 offset:{LL+16*k}')
    a('s_waitcnt lgkmcnt(0)')
    for k in range(1, 32): a(f'v_add_f32 v32, v32, v{32+k}\nv_add_f32 v92, v92, v{92+k}')
    a('v_rcp_f32 v92, v92\ns_nop 0\nv_mul_f32 v32, v32, v92')
    a(f'ds_write_b32 v14, v32 offset:{LC}')
    a('C_s3done:\ns_mov_b64 exec, s[32:33]')
    a('s_waitcnt lgkmcnt(0)\ns_barrier')
    a('v_mul_u32_u24 v14, 96, v6')
    for k in range(6): a(f'ds_read_b128 {vr(32+4*k)}, v14 offset:{LC+16*k}')
    a('v_mov_b32 v10, 0\nv_mov_b32 v11, 0')
    a('s_waitcnt vmcnt(0) lgkmcnt(0)')
    for k in range(24):
        a(f'v_lshlrev_b32 v14, 16, v{64+k}\nv_and_b32 v15, 0xffff0000, v{64+k}')
        a(f'v_fma_f32 v10, v14, v{32+k}, v10\nv_fma_f32 v11, v15, v{32+k}, v11')
    a('v_lshlrev_b32 v14, 3, v0')
    a(f'ds_write_b64 v14, v[10:11] offset:{LY}')
    a('s_waitcnt lgkmcnt(0)\ns_barrier')
    a('v_cmp_gt_u32 vcc, 96, v0\ns_and_saveexec_b64 s[32:33], vcc\ns_cbranch_execz C_end')
    for k in range(8): a(f'ds_read_b64 {vr(32+2*k,2)}, v14 offset:{LY+768*k}')
    a('v_lshlrev_b32 v10, 16, v88\nv_and_b32 v11, 0xffff0000, v88')
    a('s_waitcnt lgkmcnt(0)')
    for k in range(8): a(f'v_add_f32 v10, v10, v{32+2*k}\nv_add_f32 v11, v11, v{33+2*k}')
    a('v_cvt_pk_bf16_f32 v10, v10, v11')
    a('buffer_store_dword v10, v9, s[20:23], s30 offen')
    a('C_end:\ns_endpgm')
    return 32768

def build(fn, ldflag='nt', dbg=False):
    a = Asm()
    a(header([('prep_kernel', 192, 64, 0), ('main_kernel', 256, 512, LDS_MAIN), ('comb_kernel', 16, 768, 32768)]))
    gen_prep(a); gen_main(a, ldflag, dbg); gen_comb(a)
    a(kdesc('prep_kernel', 256)); a(kdesc('main_kernel', 256)); a(kdesc('comb_kernel', 128))
    open(fn, 'w').write(a.text())

if __name__ == '__main__':
    build('v1_nt.s', 'nt')
    build('v1_def.s', '')
    build('v1_dbg.s', 'nt', True)
```

```python
import sys, math, struct
from asmlib import *

WS_A = 0
WS_WV = 24576
WS_WO = 98304
WS_FLAG = 172032
WS_PART = 262144
WS_ML = WS_PART + 16 * 256 * 384
WS_BYTES = 402653184
LOG2E = 1.4426950408889634
NK = 4
KVS = 24576
LAT0, LAT1 = 98304, 110592
FLO = 122880
NF = 4
OB = 98304
MLB = 147456
PW = 149504
LDS_TOTAL = 149568
PST = 3 * KVS
FACC = 0
FML = 12288
FCTX = 12800
THR = 32.0
OOB = 0x10000000
NA_TASK = 48
NV_TASK = 48
P_Q, P_FHI, P_FLO, P_WLAT, P_WQ, P_WK, P_WV, P_WO, P_WM, P_OUT, P_DBG, P_WS = range(48, 72, 2)

def f2u(x): return struct.unpack('<I', struct.pack('<f', x))[0]
def vr(b, n=4): return f'v[{b}:{b+n-1}]'
def srd(a, d, b, size):
    a(f's_mov_b32 s{d}, s{b}\ns_mov_b32 s{d+1}, s{b+1}\ns_mov_b32 s{d+2}, {size}\ns_mov_b32 s{d+3}, 0x20000')

class Cfg:
    ld = 'nt'
    f_early = 1
    prio_c = 0
    prio_p = 0
    safe = False

def gen_kernel(a, cfg):
    K = NAME + '_kernel'
    a(kstart(K))
    a('s_cmp_ge_u32 s2, 256\ns_cbranch_scc1 M_end')
    a('s_load_dwordx16 s[48:63], s[0:1], 0\ns_load_dwordx8 s[64:71], s[0:1], 64')
    a('v_lshrrev_b32 v1, 6, v0\nv_and_b32 v0, 63, v0\nv_readfirstlane_b32 s24, v1')
    a('s_and_b32 s3, s2, 7\ns_lshl_b32 s3, s3, 5\ns_lshr_b32 s4, s2, 3\ns_add_u32 s3, s3, s4')
    a('s_sub_u32 s4, s2, 120\ns_lshr_b32 s5, s4, 3\ns_xor_b32 s6, s4, s5\ns_and_b32 s6, s6, 7\ns_cmp_eq_u32 s6, 0\ns_cselect_b32 s5, s5, -1')
    a('s_cmp_lt_u32 s4, 128\ns_cselect_b32 s5, s5, -1')
    a('s_cmp_ge_u32 s24, 4\ns_cbranch_scc1 M_cons')
    gen_prod(a, cfg)
    a('M_cons:')
    gen_cons(a, cfg)
    gen_fin(a, cfg)
    a('M_end:\ns_endpgm')

def gen_prod(a, cfg):
    ldflag = cfg.ld
    WL = 0; F = 72; X = 144; B = 192; D = 216
    vG, vFl0, vFl1, vLw0, vLw1, vLw2, vLr0, vLr1, vKw0, vKw1 = range(228, 238)
    SA0, RN0, SQ0, NB0, SA1, RN1, SQ1, NB1 = range(238, 246)
    ID = 246
    T0, T1, T2, T3, VL = 248, 249, 250, 251, 252
    a(f'v_mov_b32 v{VL}, v0')
    a('s_mul_i32 s25, s2, 393216\ns_lshr_b32 s28, s24, 1\ns_mul_i32 s28, s28, 196608\ns_add_u32 s25, s25, s28')
    a('s_and_b32 s29, s24, 1\ns_mul_i32 s28, s29, 6144\ns_add_u32 s25, s25, s28')
    a(f'v_lshrrev_b32 v{T0}, 3, v{VL}\nv_and_b32 v{T1}, 7, v{VL}')
    a(f'v_mul_u32_u24 v{vG}, 384, v{T0}\nv_lshl_add_u32 v{vG}, v{T1}, 4, v{vG}')
    a('s_waitcnt lgkmcnt(0)')
    srd(a, 8, P_FHI, 100663296)
    def fload(slot, idx, soff):
        u, t = idx // 3, idx % 3
        a(f'buffer_load_dwordx4 {vr(F+slot*24+idx*4)}, v{vG}, s[8:11], {soff} offen offset:{u*3072+t*128} {ldflag}')
    a('s_mov_b32 s26, s25')
    for sl in range(cfg.f_early):
        for i in range(6): fload(sl, i, 's26')
        a('s_add_u32 s26, s26, 12288')
    srd(a, 20, P_WS, WS_BYTES)
    A0, A1, A2, A3 = X, X + 1, X + 2, X + 3
    TR = X + 4
    a(f'v_and_b32 v{T2}, 15, v{VL}\nv_lshrrev_b32 v{T3}, 4, v{VL}')
    a(f'v_and_b32 v{vFl0}, 6, v{T2}\nv_xor_b32 v{vFl0}, v{vFl0}, v{T3}\nv_lshlrev_b32 v{vFl0}, 4, v{vFl0}')
    a(f'v_mul_u32_u24 v{vFl1}, 384, v{T2}\nv_add_u32 v{vFl1}, {FLO}, v{vFl1}')
    a(f'v_xor_b32 v{A0}, 64, v{vFl0}\nv_add_u32 v{vFl0}, v{vFl0}, v{vFl1}\nv_add_u32 v{vFl1}, v{A0}, v{vFl1}')
    a(f'v_and_b32 v{A0}, 1, v{T3}\nv_mul_u32_u24 v{A0}, 6144, v{A0}\nv_mul_u32_u24 v{A1}, 384, v{T2}\nv_add_u32 v{A0}, v{A0}, v{A1}\nv_add_u32 v{A0}, {LAT0}, v{A0}')
    a(f'v_lshrrev_b32 v{A1}, 1, v{T3}\ns_mul_i32 s31, s24, 6\nv_add_u32 v{A1}, s31, v{A1}')
    a(f'v_and_b32 v{A2}, 7, v{T2}')
    for T, rr in enumerate((vLw0, vLw1, vLw2)):
        a(f'v_add_u32 v{A3}, {2*T}, v{A1}')
        a(f'v_xor_b32 v{A3}, v{A3}, v{A2}\nv_lshl_add_u32 v{rr}, v{A3}, 4, v{A0}')
    a(f's_mul_i32 s30, s29, 3072\ns_add_u32 s30, s30, {LAT0}')
    a(f'v_mul_u32_u24 v{A0}, 384, v{T3}\nv_add_u32 v{A0}, s30, v{A0}')
    a(f'v_xor_b32 v{A1}, v{T1}, v{T3}\nv_lshlrev_b32 v{A1}, 4, v{A1}')
    a(f'v_add_u32 v{vLr0}, v{A0}, v{A1}')
    a(f'v_xor_b32 v{A1}, 64, v{A1}\nv_add_u32 v{vLr1}, v{A0}, v{A1}\nv_add_u32 v{vLr1}, 1536, v{vLr1}')
    a(f'v_and_b32 v{A0}, 1, v{T3}\nv_lshlrev_b32 v{A0}, 2, v{A0}\nv_lshrrev_b32 v{A1}, 5, v{VL}\nv_or_b32 v{A0}, v{A0}, v{A1}')
    a(f'v_xor_b32 v{A0}, v{A0}, v{T1}\nv_lshlrev_b32 v{A0}, 4, v{A0}')
    a(f's_mul_i32 s30, s24, 6144')
    a(f'v_mul_u32_u24 v{A1}, 384, v{T0}\nv_add_u32 v{A1}, s30, v{A1}')
    a(f'v_add_u32 v{vKw0}, v{A0}, v{A1}')
    a(f'v_xor_b32 v{A0}, 32, v{A0}\nv_add_u32 v{vKw1}, v{A0}, v{A1}\nv_add_u32 v{vKw1}, 3072, v{vKw1}')
    a(f'v_bfe_u32 v{A0}, v{VL}, 2, 2\nv_lshl_add_u32 v{A0}, v{T3}, 3, v{A0}\nv_mul_u32_u24 v{A0}, 384, v{A0}')
    a(f'v_and_b32 v{A1}, 1, v{VL}\nv_lshl_add_u32 v{A0}, v{A1}, 3, v{A0}')
    a(f'v_bfe_u32 v{A1}, v{VL}, 3, 2\nv_lshlrev_b32 v{A1}, 1, v{A1}')
    a(f'v_bfe_u32 v{A2}, v{VL}, 1, 1\nv_add_u32 v{A2}, s31, v{A2}')
    for T in range(3):
        a(f'v_add_u32 v{A3}, {2*T}, v{A2}\nv_xor_b32 v{A3}, v{A3}, v{A1}\nv_lshl_add_u32 v{TR+T}, v{A3}, 4, v{A0}')
    a(f'v_lshlrev_b32 v{A0}, 2, v{T3}\nv_sub_u32 v{A0}, v{T2}, v{A0}')
    a(f'v_mov_b32 v{A1}, 0x3f80\nv_mov_b32 v{A2}, 1.0')
    for k in range(2):
        a(f'v_cmp_eq_u32 vcc, {2*k}, v{A0}\ns_nop 1\nv_cndmask_b32 v{ID+k}, 0, v{A1}, vcc')
        a(f'v_cmp_eq_u32 vcc, {2*k+1}, v{A0}\ns_nop 1\nv_cndmask_b32 v{ID+k}, v{ID+k}, v{A2}, vcc')
    a(f's_mov_b32 s34, {f2u(1.0/192):#x}\ns_mov_b32 s35, {f2u(1e-5):#x}')
    a(f's_mov_b32 s36, {LAT1-LAT0}')
    a('s_mov_b32 s38, 0\ns_movk_i32 s46, 6144\ns_movk_i32 s47, 24576')
    a('s_mov_b32 s27, 0')
    for sl in range(cfg.f_early, 3):
        for i in range(6): fload(sl, i, 's26')
        a('s_add_u32 s26, s26, 12288')
    if cfg.prio_p: a(f's_setprio {cfg.prio_p}')
    def flo_reads():
        return [f'ds_read_b128 {vr(B+4*s)}, v{vFl1 if s&1 else vFl0} offset:{(s>>1)*128}' for s in range(6)]
    def mfma(s, T):
        c = '0' if s == 0 else vr(D + 4 * T)
        return f'v_mfma_f32_16x16x32_bf16 {vr(D+4*T)}, {vr(WL+(T*6+s)*4)}, {vr(B+4*s)}, {c}'
    def flo_advance():
        return [f's_add_u32 s38, s38, 1\ns_and_b32 s38, s38, {NF-1}\ns_cmp_eq_u32 s38, 0\ns_cselect_b32 s31, {(-(NF-1)*6144) & 0xffffffff:#x}, s46',
                f'v_add_u32 v{vFl0}, s31, v{vFl0}', f'v_add_u32 v{vFl1}, s31, v{vFl1}']
    lw = [f'ds_write_b128 v{rr}, {vr(D+4*T)}' for T, rr in enumerate((vLw0, vLw1, vLw2))]
    a('s_barrier')
    for x in flo_reads(): a(x)
    n = 6
    for s in range(6):
        for T in range(3):
            for b in range(2):
                a(f'ds_read_b64_tr_b16 {vr(WL+(T*6+s)*4+2*b,2)}, v{TR+T} offset:{s*12288+b*1536}')
    for x in flo_advance(): a(x)
    for s in range(6):
        a(f's_waitcnt lgkmcnt({min(15, 6*(5-s))})')
        for T in range(3): a(mfma(s, T))
    for x in flo_reads(): a(x)
    for x in flo_advance(): a(x)
    a('s_nop 2')
    for x in lw: a(x)
    for rr in (vLw0, vLw1, vLw2): a(f'v_add_u32 v{rr}, s36, v{rr}')
    a('s_waitcnt lgkmcnt(0)\ns_barrier')
    def xread(u, t, hh):
        return f'ds_read_b128 {vr(X+(u*3+t)*8+4*hh)}, v{vLr1 if u else vLr0} offset:{hh*6144+t*128}'
    def addm(slot, u, i):
        t, hh = i // 2, i % 2
        fr = F + slot * 24 + (u * 3 + t) * 4 + 2 * hh
        xb = X + (u * 3 + t) * 8 + 4 * hh
        return f'v_mfma_f32_16x16x16_bf16 {vr(xb)}, {vr(ID,2)}, {vr(fr,2)}, {vr(xb)}'
    def stats(u):
        sa, sq = (SA1, SQ1) if u else (SA0, SQ0)
        xb = X + u * 24
        out = [f'v_add_f32 v{sa}, v{xb}, v{xb+1}', f'v_mul_f32 v{sq}, v{xb}, v{xb}', f'v_fmac_f32 v{sq}, v{xb+1}, v{xb+1}']
        for k in range(2, 24):
            out.append(f'v_add_f32 v{sa}, v{sa}, v{xb+k}')
            out.append(f'v_fmac_f32 v{sq}, v{xb+k}, v{xb+k}')
        return out
    def reduce(u):
        sa, sq, rn, nb = (SA1, SQ1, RN1, NB1) if u else (SA0, SQ0, RN0, NB0)
        out = []
        for pat in ('quad_perm:[1,0,3,2]', 'quad_perm:[2,3,0,1]', 'row_half_mirror'):
            for r in (sa, sq): out.append(f'v_add_f32_dpp v{r}, v{r}, v{r} {pat} row_mask:0xf bank_mask:0xf')
        out.append(f'v_mul_f32 v{sa}, s34, v{sa}')
        out.append(f'v_fma_f32 v{nb}, -v{sa}, v{sa}, s35')
        out.append(f'v_fma_f32 v{sq}, v{sq}, s34, v{nb}')
        out.append(f'v_max_f32 v{sq}, s35, v{sq}')
        out.append(f'v_rsq_f32 v{rn}, v{sq}')
        out.append(f'v_mul_f32 v{nb}, -v{sa}, v{rn}')
        return out
    def norm(u):
        rn, nb = (RN1, NB1) if u else (RN0, NB0)
        out = []
        for t in range(3):
            xb = X + (u * 3 + t) * 8
            for e in range(4):
                out.append(f'v_fma_f32 v{xb+2*e}, v{xb+2*e}, v{rn}, v{nb}')
                out.append(f'v_fma_f32 v{xb+2*e+1}, v{xb+2*e+1}, v{rn}, v{nb}')
            for e in range(4):
                out.append(f'v_cvt_pk_bf16_f32 v{xb+e}, v{xb+2*e}, v{xb+2*e+1}')
            out.append(f'ds_write_b128 v{vKw1 if u else vKw0}, {vr(xb)} offset:{t*128}')
        return out
    def weave(main, ins):
        d = {}
        for pos, x in ins: d.setdefault(pos, []).append(x)
        for k, x in enumerate(main):
            for y in d.get(k, []): a(y)
            a(x)
        for y in d.get(len(main), []): a(y)
    def subphase(slot):
        a(';T')
        for t in range(3):
            for hh in range(2): a(xread(0, t, hh))
        xr = [xread(1, t, hh) for t in range(3) for hh in range(2)]
        ms = [mfma(s, T) for s in range(6) for T in range(3)]
        a(f's_add_u32 s40, s27, 3\ns_cmp_lt_u32 s40, 16\ns_cselect_b32 s41, s26, {OOB:#x}\ns_add_u32 s26, s26, 12288')
        for i in range(6):
            a(ms[i]); a(xr[i])
        a('s_waitcnt vmcnt(15) lgkmcnt(6)')
        a(';T')
        for i in range(6):
            a(addm(slot, 0, i))
            if i >= 3: fload_l = None
        for i in range(3): fload(slot, i, 's41')
        a(';T')
        s0 = stats(0); s1 = stats(1)
        for i in range(12):
            a(ms[6 + i]); a(s0[2 * i]); a(s0[2 * i + 1])
        a(';T')
        a('s_waitcnt vmcnt(15) lgkmcnt(0)')
        a(';T')
        for i in range(6):
            a(addm(slot, 1, i)); a(s0[24 + 2 * i]); a(s0[25 + 2 * i])
        for i in range(3, 6): fload(slot, i, 's41')
        if slot == 0:
            a('s_cmp_lg_u32 s27, 15\ns_cbranch_scc1 PL_nowv')
            a(f'v_lshlrev_b32 v{T2}, 4, v{VL}')
            a(f's_mul_i32 s30, s24, 18432\ns_add_u32 s30, s30, {WS_WV}')
            for k in range(18):
                if k and k % 4 == 0: a('s_add_u32 s30, s30, 4096')
                a(f'buffer_load_dwordx4 {vr(WL+4*k)}, v{T2}, s[20:23], s30 offen offset:{(k%4)*1024} sc1')
            a('PL_nowv:')
        a(';T')
        r0 = reduce(0); r1 = reduce(1)
        fr = flo_reads()
        rest = s0[36:] + s1
        ins = [(13 + 3 * k, r0[k]) for k in range(12)] + [(2, lw[0]), (16, lw[1]), (30, lw[2])]
        ins += [(40 + 3 * k, fr[k]) for k in range(6)]
        weave(rest, ins)
        a(';T')
        n0 = norm(0); n1 = norm(1)
        weave(n0, [(2 + 3 * k, r1[k]) for k in range(12)])
        a(';T')
        tog = [f's_sub_u32 s31, 0, s36'] + [f'v_add_u32 v{rr}, s31, v{rr}' for rr in (vLw0, vLw1, vLw2)] + [f'v_add_u32 v{rr}, s36, v{rr}' for rr in (vLr0, vLr1)] + ['s_mov_b32 s36, s31']
        for x in tog: a(x)
        for x in flo_advance(): a(x)
        for x in n1: a(x)
        a(f's_add_u32 s27, s27, 1\ns_and_b32 s31, s27, {NK-1}\ns_cmp_eq_u32 s31, 0\ns_cselect_b32 s31, {(-(NK-1)*KVS) & 0xffffffff:#x}, s47')
        for rr in (vKw0, vKw1): a(f'v_add_u32 v{rr}, s31, v{rr}')
        a(';T')
        a('s_waitcnt lgkmcnt(0)')
        a(';TFLUSH s27 10')
        a('s_barrier')
    a('PL_loop:')
    subphase(0)
    a('s_cmp_eq_u32 s27, 16\ns_cbranch_scc1 PL_done')
    subphase(1)
    subphase(2)
    a('s_branch PL_loop')
    a('PL_done:')
    a(f's_mul_i32 s31, s24, 6144\ns_add_u32 s31, s31, {OB}\nv_add_u32 v{T2}, s31, v{T2}')
    a(f'v_and_b32 v{T0}, 15, v{VL}\nv_lshrrev_b32 v{T3}, 4, v{VL}')
    a(f's_lshl_b32 s31, s24, 9\ns_add_u32 s31, s31, {MLB}\nv_lshl_add_u32 v{T1}, v{T0}, 5, s31')
    a(f'v_mul_u32_u24 v{vFl0}, 98304, v{T0}\nv_lshl_add_u32 v{vFl0}, v{T3}, 3, v{vFl0}')
    a(f's_mul_i32 s42, s3, 384\ns_mul_i32 s31, s24, 96\ns_add_u32 s42, s42, s31\ns_add_u32 s42, s42, {WS_PART}')
    a(f'v_lshlrev_b32 v{vFl1}, 13, v{T0}')
    a(f's_lshl_b32 s43, s3, 5\ns_lshl_b32 s31, s24, 3\ns_add_u32 s43, s43, s31\ns_add_u32 s43, s43, {WS_ML}')
    a(f'v_mov_b32 v{vLw0}, {PW+4}\nv_mov_b32 v{vLw1}, 1\nv_mov_b32 v{vLw2}, 0')
    a(f's_lshl_b32 s44, s3, 2\ns_add_u32 s44, s44, {WS_FLAG}')
    a('s_barrier')
    OF = 72; ML = 120; DD = 128
    a(f'ds_read_b128 {vr(ML)}, v{T1}\nds_read_b128 {vr(ML+4)}, v{T1} offset:16')
    for ct in range(6):
        for ks in range(2):
            a(f'ds_read_b128 {vr(OF+(ks*6+ct)*4)}, v{T2} offset:{ks*24576+ct*1024}')
    a('s_waitcnt vmcnt(0) lgkmcnt(12)')
    F0, F1, L = 153, 154, 155
    pre = [f'v_max_f32 v156, v{ML}, v{ML+4}',
           f'v_sub_f32 v{F0}, v{ML}, v156', f'v_sub_f32 v{F1}, v{ML+4}, v156',
           f'v_exp_f32 v{F0}, v{F0}', f'v_exp_f32 v{F1}, v{F1}',
           f'v_add_f32 v{ML+1}, v{ML+1}, v{ML+3}', f'v_add_f32 v{ML+5}, v{ML+5}, v{ML+7}',
           f'v_mul_f32 v157, v{F0}, v{ML+1}', f'v_fma_f32 v157, v{F1}, v{ML+5}, v157',
           f'v_rcp_f32 v{L}, v157', 's_nop 0', f'v_mul_f32 v{F0}, v{F0}, v{L}', f'v_mul_f32 v{F1}, v{F1}, v{L}']
    for x in pre: a(x)
    for ct in range(6):
        a(f's_waitcnt lgkmcnt({10-2*ct})')
        for ks in range(2):
            for T in range(3):
                d = DD + (ks * 3 + T) * 4
                c = '0' if ct == 0 else vr(d)
                a(f'v_mfma_f32_16x16x32_bf16 {vr(d)}, {vr(WL+(T*6+ct)*4)}, {vr(OF+(ks*6+ct)*4)}, {c}')
    a(f'v_cmp_gt_u32 vcc, 16, v{VL}\ns_and_saveexec_b64 s[32:33], vcc')
    a(f'buffer_store_dwordx2 v[156:157], v{vFl1}, s[20:23], s43 offen sc1')
    a('s_mov_b64 exec, s[32:33]')
    a('s_nop 3')
    for T in range(3):
        for r in range(4):
            a(f'v_mul_f32 v{DD+T*4+r}, v{DD+T*4+r}, v{F0}')
            a(f'v_fma_f32 v{DD+T*4+r}, v{DD+12+T*4+r}, v{F1}, v{DD+T*4+r}')
        a(f'v_cvt_pk_bf16_f32 v{160+2*T}, v{DD+T*4}, v{DD+T*4+1}\nv_cvt_pk_bf16_f32 v{161+2*T}, v{DD+T*4+2}, v{DD+T*4+3}')
        a(f'buffer_store_dwordx2 {vr(160+2*T,2)}, v{vFl0}, s[20:23], s42 offen offset:{32*T} sc1')
    a(';STAMP')
    a('s_waitcnt vmcnt(0)')
    a(';STAMP')
    a('s_mov_b64 exec, 1')
    a(f'ds_add_rtn_u32 v{T0}, v{vLw0}, v{vLw1}\ns_waitcnt lgkmcnt(0)\nv_readfirstlane_b32 s31, v{T0}')
    a('s_cmp_lg_u32 s31, 3\ns_cbranch_scc1 PL_noflag')
    a(f'buffer_store_dword v{vLw1}, v{vLw2}, s[20:23], s44 offen sc1')
    a('PL_noflag:\ns_mov_b64 exec, -1')
    a(f'v_mov_b32 v0, v{VL}')
    a('s_cmp_lt_i32 s5, 0\ns_cbranch_scc0 FIN')
    a('s_endpgm')

def gen_prep(a, cfg, VL):
    L15, G = 160, 161
    a(f'v_and_b32 v{L15}, 15, v{VL}\nv_lshrrev_b32 v{G}, 4, v{VL}')
    a(f's_cmp_ge_u32 s2, {NA_TASK + NV_TASK}\ns_cbranch_scc1 PR_done')
    a(f's_cmp_ge_u32 s2, {NA_TASK}\ns_cbranch_scc1 PR_taskV')
    QF = 96; WK = 120; FR = 0; DQ = 144
    a('s_mul_i32 s36, s2, 5462\ns_lshr_b32 s36, s36, 16\ns_mul_i32 s37, s36, 12\ns_sub_u32 s37, s2, s37')
    srd(a, 16, P_WQ, 73728)
    a(f'v_lshlrev_b32 v162, 4, v{VL}')
    a(f's_mul_i32 s38, s36, 18432\ns_mov_b32 m0, {PST}\ns_mov_b32 s39, s38')
    for j in range(18):
        if j and j % 4 == 0: a(f's_add_u32 s39, s39, 4096\ns_mov_b32 m0, {PST + j*1024}\ns_nop 0')
        a(f'buffer_load_dwordx4 v162, s[16:19], s39 offen offset:{(j%4)*1024} lds')
    srd(a, 40, P_WM, 73728)
    a(f'v_lshrrev_b32 v163, 1, v{VL}\nv_mul_u32_u24 v163, 384, v163\nv_and_b32 v164, 1, v{VL}\nv_lshl_add_u32 v163, v164, 4, v163')
    a('s_lshl_b32 s39, s37, 5')
    for j in range(6):
        a(f's_mov_b32 m0, {PST + 18432 + j*1024}\ns_nop 0')
        a(f'buffer_load_dwordx4 v163, s[40:43], s39 offen lds')
        if j < 5: a('s_add_u32 s39, s39, 12288')
    srd(a, 16, P_Q, 6144)
    a(f'v_mul_u32_u24 v164, 384, v{L15}\nv_lshl_add_u32 v164, v{G}, 4, v164')
    for s in range(6):
        a(f'buffer_load_dwordx4 {vr(QF+4*s)}, v164, s[16:19], 0 offen offset:{64*s}')
    srd(a, 40, P_WK, 73728)
    a(f'v_mul_u32_u24 v165, 96, v{L15}\nv_lshl_add_u32 v165, v{G}, 3, v165')
    a('s_mul_i32 s39, s37, 1536\ns_add_u32 s39, s38, s39')
    for T in range(3):
        a(f'buffer_load_dwordx2 {vr(WK+2*T,2)}, v165, s[40:43], s39 offen offset:{32*T}')
    a(f'v_bfe_u32 v166, v{VL}, 2, 2\nv_lshl_add_u32 v166, v{G}, 3, v166\nv_and_b32 v167, 3, v{VL}\nv_lshlrev_b32 v167, 3, v167')
    a(f'v_lshl_add_u32 v168, v166, 5, v167\nv_add_u32 v168, {PST+18432}, v168')
    a(f'v_mul_u32_u24 v166, 96, v166\nv_add_u32 v166, v166, v167\nv_add_u32 v166, {PST}, v166')
    a(f'v_lshrrev_b32 v169, 1, v{G}\nv_lshlrev_b32 v169, 9, v169\nv_lshl_add_u32 v169, v{L15}, 4, v169\nv_and_b32 v170, 1, v{G}\nv_lshl_add_u32 v169, v170, 3, v169')
    a('s_lshr_b32 s44, s36, 1\ns_mul_i32 s44, s44, 12\ns_add_u32 s44, s44, s37\ns_lshl_b32 s44, s44, 10')
    a(f's_and_b32 s45, s36, 1\ns_lshl_b32 s45, s45, 8\ns_add_u32 s44, s44, s45\ns_add_u32 s44, s44, {WS_A}')
    a(f's_mov_b32 s46, {f2u(LOG2E * 48 ** -0.5):#x}\ns_mov_b32 s47, {f2u(LOG2E * 192 ** -0.5):#x}')
    a('s_cmp_lg_u32 s2, 0\ns_cbranch_scc1 PR_noclr')
    a('v_mov_b32 v172, 0\nv_mov_b32 v173, 0\nv_mov_b32 v174, 0\nv_mov_b32 v175, 0')
    a(f's_mov_b32 s45, {WS_FLAG}')
    a('buffer_store_dwordx4 v[172:175], v162, s[20:23], s45 offen sc1')
    a('PR_noclr:')
    a('s_waitcnt vmcnt(0)')
    a(';STAMP')
    for s in range(6):
        for T in range(4):
            for b in range(2):
                if T < 3: a(f'ds_read_b64_tr_b16 {vr(FR+(s*4+T)*4+2*b,2)}, v166 offset:{s*3072+b*384+T*32}')
                else:     a(f'ds_read_b64_tr_b16 {vr(FR+(s*4+T)*4+2*b,2)}, v168 offset:{s*1024+b*128}')
    for s in range(6):
        a(f's_waitcnt lgkmcnt({min(15, 8*(5-s))})')
        for T in range(4):
            c = '0' if s == 0 else vr(DQ + 4 * T)
            a(f'v_mfma_f32_16x16x32_bf16 {vr(DQ+4*T)}, {vr(FR+(s*4+T)*4)}, {vr(QF+4*s)}, {c}')
    a('s_nop 7')
    for T in range(3):
        a(f'v_cvt_pk_bf16_f32 v{128+2*T}, v{DQ+4*T}, v{DQ+4*T+1}')
        a(f'v_cvt_pk_bf16_f32 v{129+2*T}, v{DQ+4*T+2}, v{DQ+4*T+3}')
    a(f'v_cvt_pk_bf16_f32 v134, v{DQ+12}, v{DQ+13}\nv_cvt_pk_bf16_f32 v135, v{DQ+14}, v{DQ+15}')
    a(f'v_mfma_f32_16x16x32_bf16 v[136:139], {vr(WK)}, v[128:131], 0')
    a(f'v_mfma_f32_16x16x16_bf16 v[140:143], {vr(WK+4,2)}, v[132:133], 0')
    a(f'v_lshlrev_b32 v{DQ+12}, 16, v134\nv_and_b32 v{DQ+13}, 0xffff0000, v134\nv_lshlrev_b32 v{DQ+14}, 16, v135\nv_and_b32 v{DQ+15}, 0xffff0000, v135')
    for r in range(4): a(f'v_mul_f32 v{DQ+12+r}, s47, v{DQ+12+r}')
    a('s_nop 0')
    for r in range(4):
        a(f'v_add_f32 v{136+r}, v{136+r}, v{140+r}')
        a(f'v_fma_f32 v{136+r}, v{136+r}, s46, v{DQ+12+r}')
    a('v_cvt_pk_bf16_f32 v140, v136, v137\nv_cvt_pk_bf16_f32 v141, v138, v139')
    a('buffer_store_dwordx2 v[140:141], v169, s[20:23], s44 offen sc1')
    a('v_mov_b32 v171, 0')
    a('s_branch PR_signal')
    a('PR_taskV:')
    a(f's_sub_u32 s36, s2, {NA_TASK}')
    a('s_cmp_ge_u32 s36, 24\ns_cbranch_scc1 PR_taskO')
    srd(a, 16, P_WV, 73728)
    a('s_mul_i32 s37, s36, 43\ns_lshr_b32 s37, s37, 8\ns_mul_i32 s38, s37, 6\ns_sub_u32 s38, s36, s38')
    a('s_mul_i32 s39, s37, 18432\ns_lshr_b32 s40, s38, 1\ns_lshl_b32 s40, s40, 5\ns_add_u32 s39, s39, s40\ns_and_b32 s40, s38, 1\ns_mul_i32 s40, s40, 9216\ns_add_u32 s39, s39, s40')
    a(f'v_and_b32 v162, 1, v{G}\nv_lshrrev_b32 v163, 1, v{G}\nv_mul_u32_u24 v162, 1536, v162\nv_mul_u32_u24 v163, 384, v163\nv_add_u32 v162, v162, v163\nv_lshl_add_u32 v162, v{L15}, 1, v162')
    for j in range(3):
        for i in range(8):
            a(f'buffer_load_ushort v{8*j+i}, v162, s[16:19], s39 offen offset:{(8*(i>>2)+(i&3))*96}')
        if j < 2: a('s_add_u32 s39, s39, 3072')
    a(f's_mul_i32 s44, s36, 3072\ns_add_u32 s44, s44, {WS_WV}')
    a('s_branch PR_pack')
    a('PR_taskO:')
    srd(a, 16, P_WO, 73728)
    a('s_sub_u32 s36, s36, 24\ns_lshr_b32 s37, s36, 1\ns_lshl_b32 s39, s37, 5\ns_and_b32 s40, s36, 1\ns_mul_i32 s40, s40, 36864\ns_add_u32 s39, s39, s40')
    a(f'v_mul_u32_u24 v162, 3072, v{G}\nv_lshl_add_u32 v162, v{L15}, 1, v162')
    for j in range(3):
        for i in range(8):
            a(f'buffer_load_ushort v{8*j+i}, v162, s[16:19], s39 offen offset:{i*384}')
        if j < 2: a('s_add_u32 s39, s39, 12288')
    a(f's_mul_i32 s44, s36, 3072\ns_add_u32 s44, s44, {WS_WO}')
    a('PR_pack:')
    a(f'v_lshlrev_b32 v163, 4, v{VL}\nv_mov_b32 v171, 128')
    a('s_waitcnt vmcnt(0)')
    for j in range(3):
        for e in range(4):
            a(f'v_lshl_or_b32 v{32+4*j+e}, v{8*j+2*e+1}, 16, v{8*j+2*e}')
        a(f'buffer_store_dwordx4 {vr(32+4*j)}, v163, s[20:23], s44 offen offset:{1024*j} sc1')
    a('PR_signal:')
    a('v_mov_b32 v170, 1')
    a('s_waitcnt vmcnt(0)')
    a('s_mov_b64 exec, 1')
    a('buffer_atomic_add v170, v171, s[8:11], 0 offen')
    a('s_mov_b64 exec, -1')
    a(';STAMP')
    a('PR_done:')

def gen_cons(a, cfg):
    ldflag = cfg.ld
    O = 0; AF = 96; NM = 144; S = 160; P = 176; KF = 184
    aS = [232, 233, 234, 235]; aT = [236, 237, 238, 239]
    vDma = 240; vPW = 241; LA = 242; T0, T1, T2, T3, VL = 244, 245, 246, 247, 248
    vOB, vMLw, vA = 249, 250, 251
    a(f'v_mov_b32 v{VL}, v0')
    a('s_sub_u32 s25, s24, 4')
    a('s_and_b32 s26, s25, 1\ns_lshr_b32 s27, s25, 1')
    a(f'v_mov_b32 v{vPW}, {PW}')
    a('s_cmp_eq_u32 s25, 3\ns_cbranch_scc1 C_w3pro')
    a(f's_lshl_b32 s28, s25, 6\nv_add_u32 v{T0}, s28, v{VL}')
    a(f'v_mul_u32_u24 v{T1}, 2731, v{T0}\nv_lshrrev_b32 v{T1}, 16, v{T1}')
    a(f'v_mul_u32_u24 v{T2}, 24, v{T1}\nv_sub_u32 v{T2}, v{T0}, v{T2}')
    a(f'v_and_b32 v{T3}, 6, v{T1}\nv_xor_b32 v{T3}, v{T2}, v{T3}')
    a(f'v_mul_u32_u24 v{T1}, 384, v{T1}\nv_lshl_add_u32 v{vDma}, v{T3}, 4, v{T1}')
    a(f'v_mul_u32_u24 v{T3}, 2731, v{T0}\nv_lshrrev_b32 v{T3}, 16, v{T3}\nv_and_b32 v{T3}, 2, v{T3}\nv_xor_b32 v{T3}, v{T2}, v{T3}')
    a(f'v_lshl_add_u32 v{T2}, v{T3}, 4, v{T1}\nv_xor_b32 v{T3}, 64, v{T2}')
    a('s_mul_i32 s29, s2, 98304')
    a(f's_lshl_b32 s30, s25, 10\ns_add_u32 s33, s30, {FLO}')
    a('s_waitcnt lgkmcnt(0)')
    srd(a, 12, P_FLO, 25165824)
    srd(a, 16, P_WLAT, 73728)
    def dma(slot_imm=None):
        if slot_imm is None:
            a(f's_and_b32 s32, s31, {NF-1}\ns_mul_i32 s32, s32, 6144\ns_add_u32 s32, s32, s33\ns_mov_b32 m0, s32')
        else:
            a(f's_add_u32 s32, s33, {slot_imm*6144}\ns_mov_b32 m0, s32')
        a('s_add_u32 s31, s31, 1')
        a(f'buffer_load_dwordx4 v{vDma}, s[12:15], s29 offen {ldflag} lds')
        a(f'buffer_load_dwordx4 v{vDma}, s[12:15], s29 offen offset:3072 {ldflag} lds')
        a('s_add_u32 s29, s29, 6144')
    a('s_mov_b32 s31, 0')
    dma(0)
    a('s_mov_b32 s34, 0\ns_mov_b32 s35, s30')
    for j in range(24):
        a(f's_mov_b32 m0, s35\ns_add_u32 s35, s35, 3072')
        a(f'buffer_load_dwordx4 v{T3 if j&1 else T2}, s[16:19], s34 offen lds')
        a('s_add_u32 s34, s34, 3072')
    dma(1); dma(2); dma(3)
    srd(a, 20, P_WS, WS_BYTES)
    a('s_branch C_pro2')
    a('C_w3pro:')
    a(f'v_mov_b32 v{T0}, 0\nv_mov_b32 v{T1}, 0\nds_write_b64 v{vPW}, {vr(T0,2)}')
    a('s_waitcnt lgkmcnt(0)')
    srd(a, 20, P_WS, WS_BYTES)
    srd(a, 8, P_DBG, 256)
    gen_prep(a, cfg, VL)
    a('C_pro2:')
    a(f'v_and_b32 v{T0}, 31, v{VL}\nv_lshrrev_b32 v{T1}, 5, v{VL}')
    a(f'v_and_b32 v{T2}, 2, v{T0}\nv_lshlrev_b32 v{T2}, 1, v{T2}\nv_bfe_u32 v{T3}, v{T0}, 2, 2\nv_or_b32 v{T2}, v{T2}, v{T3}\nv_xor_b32 v{T2}, v{T2}, v{T1}\nv_lshlrev_b32 v{T2}, 4, v{T2}')
    a(f's_mul_i32 s35, s27, 12288')
    a(f'v_mul_u32_u24 v{T3}, 384, v{T0}\nv_add_u32 v{T3}, s35, v{T3}')
    for k in range(4):
        a(f'v_xor_b32 v{aS[k]}, {32*k}, v{T2}\nv_add_u32 v{aS[k]}, v{aS[k]}, v{T3}')
    a(f'v_lshlrev_b32 v{vMLw}, 5, v{T0}\nv_lshl_add_u32 v{vMLw}, v{T1}, 3, v{vMLw}')
    a(f's_lshl_b32 s39, s26, 10\ns_lshl_b32 s40, s27, 4\ns_add_u32 s39, s39, s40\ns_add_u32 s39, s39, {MLB}\nv_add_u32 v{vMLw}, s39, v{vMLw}')
    a(f'v_bfe_u32 v{T0}, v{VL}, 4, 1\nv_lshlrev_b32 v{T0}, 1, v{T0}\nv_bfe_u32 v{T2}, v{VL}, 1, 1\nv_or_b32 v{T0}, v{T0}, v{T2}')
    a(f'v_bfe_u32 v{T2}, v{VL}, 3, 1\nv_lshlrev_b32 v{T2}, 2, v{T2}\nv_or_b32 v{T2}, v{T2}, v{T1}\nv_xor_b32 v{T0}, v{T0}, v{T2}\nv_lshlrev_b32 v{T0}, 4, v{T0}')
    a(f'v_bfe_u32 v{T2}, v{VL}, 2, 2\nv_lshl_add_u32 v{T2}, v{T1}, 2, v{T2}\nv_mul_u32_u24 v{T2}, 384, v{T2}')
    a(f'v_and_b32 v{T3}, 1, v{VL}\nv_lshl_add_u32 v{T2}, v{T3}, 3, v{T2}\nv_add_u32 v{T2}, s35, v{T2}')
    for k in range(4):
        a(f'v_xor_b32 v{aT[k]}, {32*k}, v{T0}\nv_add_u32 v{aT[k]}, v{aT[k]}, v{T2}')
    a(f'v_bfe_u32 v{vOB}, v{VL}, 4, 1\nv_mul_u32_u24 v{vOB}, 6144, v{vOB}\nv_lshl_add_u32 v{vOB}, v{T1}, 9, v{vOB}')
    a(f'v_and_b32 v{T2}, 15, v{VL}\nv_lshl_add_u32 v{vOB}, v{T2}, 4, v{vOB}')
    a(f's_mul_i32 s39, s27, 24576\ns_mul_i32 s40, s26, 12288\ns_add_u32 s39, s39, s40\ns_add_u32 s39, s39, {OB}\nv_add_u32 v{vOB}, s39, v{vOB}')
    a(f'v_lshlrev_b32 v{vA}, 4, v{VL}')
    for r in range(96): a(f'v_mov_b32 v{O+r}, 0')
    for r in range(16): a(f'v_mov_b32 v{NM+r}, 0')
    a(f'v_mov_b32 v{LA}, 0\nv_mov_b32 v{LA+1}, 0')
    a('s_mov_b32 s36, 0xff800000\ns_mov_b32 s37, 0xff800000')
    a('s_mov_b32 s38, 0\ns_mov_b32 s39, 0\ns_mov_b32 s40, 0\ns_movk_i32 s47, 24576')
    if cfg.safe: a('s_mov_b32 s46, 0')
    if cfg.prio_c: a(f's_setprio {cfg.prio_c}')
    a('s_waitcnt vmcnt(4)\ns_barrier')
    a('s_waitcnt vmcnt(2)\ns_barrier')
    a('s_cmp_eq_u32 s25, 3\ns_cbranch_scc1 C_phase')
    dma()
    a('C_phase:')
    a(';T')
    a('s_cmp_eq_u32 s40, 2\ns_cbranch_scc1 C_tiles')
    a('s_cmp_eq_u32 s40, 1\ns_cbranch_scc1 C_waitA')
    a('s_add_u32 s41, s38, 1')
    a('s_cmp_eq_u32 s25, 3\ns_cbranch_scc0 C_spin')
    a(f'v_lshlrev_b32 v{T0}, 7, v{VL}')
    a('C_poll:')
    a('s_mov_b64 exec, 3')
    a(f'buffer_load_dword v{T1}, v{T0}, s[8:11], 0 offen sc1')
    a('s_mov_b64 exec, -1')
    a('s_waitcnt vmcnt(0)')
    a(f'v_readlane_b32 s42, v{T1}, 0\nv_readlane_b32 s43, v{T1}, 1')
    a(f's_cmp_ge_u32 s42, {NA_TASK}\ns_cselect_b32 s42, 0x1000, s41\ns_cmp_ge_u32 s43, {NV_TASK}\ns_cselect_b32 s42, s42, s41')
    a(f's_cmp_lt_u32 s38, {NK-1}\ns_cbranch_scc1 C_post')
    a('s_cmp_eq_u32 s42, 0x1000\ns_cbranch_scc1 C_post')
    if cfg.safe: a('s_add_u32 s46, s46, 1\ns_cmp_lt_u32 s46, 100000\ns_cselect_b32 s42, s42, 0x1000\ns_cbranch_scc0 C_post')
    a('s_sleep 4\ns_branch C_poll')
    a('C_post:')
    a(f'v_mov_b32 v{T1}, s42\nds_write_b32 v{vPW}, v{T1}')
    a('s_branch C_chk')
    a('C_spin:')
    a(f'ds_read_b32 v{T1}, v{vPW}\ns_waitcnt lgkmcnt(0)\nv_readfirstlane_b32 s42, v{T1}')
    a('s_cmp_ge_u32 s42, s41\ns_cbranch_scc1 C_chk')
    if cfg.safe: a('s_add_u32 s46, s46, 1\ns_cmp_lt_u32 s46, 1000000\ns_cselect_b32 s42, s42, 0x1000\ns_cbranch_scc0 C_chk')
    a('s_sleep 1\ns_branch C_spin')
    a('C_chk:')
    a('s_cmp_lt_u32 s42, 0x1000\ns_cbranch_scc1 C_endphase')
    a(f's_mul_i32 s34, s26, 12288\ns_add_u32 s34, s34, {WS_A}')
    for s in range(12):
        if s and s % 4 == 0: a('s_add_u32 s34, s34, 4096')
        a(f'buffer_load_dwordx4 {vr(AF+4*s)}, v{vA}, s[20:23], s34 offen offset:{(s%4)*1024} sc1')
    a('s_mov_b32 s40, 1')
    a(f's_cmp_lt_u32 s38, {NK-1}\ns_cbranch_scc1 C_endphaseA')
    a('s_waitcnt vmcnt(0)\ns_branch C_ready')
    a('C_waitA:')
    a('s_cmp_eq_u32 s25, 3\ns_cbranch_scc1 C_waitA3')
    a('s_waitcnt vmcnt(2)\ns_branch C_ready')
    a('C_waitA3:\ns_waitcnt vmcnt(0)')
    a('C_ready:\ns_mov_b32 s40, 2')
    a('C_tiles:')
    a('s_sub_u32 s44, s38, s39\ns_min_u32 s44, s44, 2')
    a('s_cmp_eq_u32 s44, 0\ns_cbranch_scc1 C_endphase')
    a('C_tile:')
    for s in range(12):
        a(f'ds_read_b128 {vr(KF+4*s)}, v{aS[s&3]} offset:{(s>>2)*128}')
    def tr(idx):
        u, ct = idx // 6, idx % 6
        return [f'ds_read_b64_tr_b16 {vr(KF+4*idx+2*b,2)}, v{aT[2*(ct&1)+b]} offset:{u*6144+b*3072+(ct>>1)*128}' for b in range(2)]
    a(f's_add_u32 s39, s39, 1\ns_and_b32 s45, s39, {NK-1}\ns_cmp_eq_u32 s45, 0\ns_cselect_b32 s45, {(-(NK-1)*KVS) & 0xffffffff:#x}, s47')
    for s in range(12):
        a(f's_waitcnt lgkmcnt({min(15, 11 - s + 2 * max(0, s - 1))})')
        if s in (0, 4, 8): a(';T')
        c = vr(NM, 16) if s == 0 else vr(S, 16)
        a(f'v_mfma_f32_32x32x16_bf16 {vr(S,16)}, {vr(KF+4*s)}, {vr(AF+4*s)}, {c}')
        if s >= 1:
            for x in tr(s - 1): a(x)
        if s < 4: a(f'v_add_u32 v{aS[s]}, s45, v{aS[s]}')
    for x in tr(11): a(x)
    for k in range(4): a(f'v_add_u32 v{aT[k]}, s45, v{aT[k]}')
    a(';T')
    a('s_nop 3')
    a(f'v_max3_f32 v{T0}, v{S}, v{S+1}, v{S+2}\nv_max3_f32 v{T1}, v{S+3}, v{S+4}, v{S+5}')
    a(f'v_max3_f32 v{T0}, v{T0}, v{S+6}, v{S+7}\nv_max3_f32 v{T1}, v{T1}, v{S+8}, v{S+9}')
    a(f'v_max3_f32 v{T0}, v{T0}, v{S+10}, v{S+11}\nv_max3_f32 v{T1}, v{T1}, v{S+12}, v{S+13}')
    a(f'v_max3_f32 v{T0}, v{T0}, v{S+14}, v{S+15}\nv_max_f32 v{T0}, v{T0}, v{T1}')
    a(f'v_cmp_lt_f32 vcc, s36, v{T0}')
    a(f's_cbranch_vccnz C_rescale')
    a(f'C_norescale:')
    a(';T')
    for r in range(8): a(f'v_exp_f32 v{S+r}, v{S+r}')
    a('s_nop 0')
    for e in range(4): a(f'v_cvt_pk_bf16_f32 v{P+e}, v{S+2*e}, v{S+2*e+1}')
    a('s_waitcnt lgkmcnt(12)\ns_nop 0')
    a(';T')
    fill = [f'v_exp_f32 v{S+r}, v{S+r}' for r in range(8, 16)]
    fill += [f'v_add_f32 v{LA}, v{LA}, v{S+2*e}\nv_add_f32 v{LA+1}, v{LA+1}, v{S+2*e+1}' for e in range(2)]
    fill += [f'v_cvt_pk_bf16_f32 v{P+e}, v{S+2*e}, v{S+2*e+1}' for e in range(4, 8)]
    fill += [f'v_add_f32 v{LA}, v{LA}, v{S+2*e}\nv_add_f32 v{LA+1}, v{LA+1}, v{S+2*e+1}' for e in range(2, 8)]
    cnt = [3, 3, 2, 2, 4, 2, 2, 2, 0, 0, 0, 0]
    k = 0
    for i in range(12):
        ct = i % 6
        if i == 6: a('s_waitcnt lgkmcnt(0)\n;T')
        a(f'v_mfma_f32_32x32x16_bf16 {vr(O+16*ct,16)}, {vr(KF+4*i)}, {vr(P+4*(i//6))}, {vr(O+16*ct,16)}')
        for x in fill[k:k + cnt[i]]: a(x)
        k += cnt[i]
    assert k == len(fill)
    a('s_sub_u32 s44, s44, 1\ns_cmp_lg_u32 s44, 0\ns_cbranch_scc1 C_tile')
    a('s_cmp_eq_u32 s39, 16\ns_cbranch_scc1 C_done')
    a('C_endphase:')
    a(';T')
    a('s_cmp_eq_u32 s25, 3\ns_cbranch_scc1 C_bar')
    a('s_cmp_ge_u32 s38, 11\ns_cbranch_scc1 C_w0')
    dma()
    a('s_waitcnt vmcnt(4)\ns_branch C_bar')
    a('C_w0:\ns_waitcnt vmcnt(0)')
    a('C_bar:')
    a(';TFLUSH s38 9')
    a('s_barrier')
    a('s_add_u32 s38, s38, 1\ns_branch C_phase')
    a('C_endphaseA:')
    a('s_cmp_eq_u32 s25, 3\ns_cbranch_scc1 C_bar')
    dma()
    a('s_waitcnt vmcnt(16)\ns_branch C_bar')
    a('C_rescale:')
    a(f'v_mov_b32 v{T1}, v{T0}\ns_nop 1\nv_permlane32_swap_b32 v{T0}, v{T1}\nv_max_f32 v{T0}, v{T0}, v{T1}')
    a(f'v_max_f32 v{T0}, s37, v{T0}')
    a(f'v_max_f32 v{T1}, 0, v{T0}\nv_exp_f32 v{T2}, -v{T1}')
    a(f's_mov_b32 s36, {f2u(THR):#x}\ns_mov_b32 s37, 0')
    for r in range(16): a(f'v_sub_f32 v{S+r}, v{S+r}, v{T0}')
    for r in range(16): a(f'v_sub_f32 v{NM+r}, v{NM+r}, v{T0}')
    for r in range(96): a(f'v_mul_f32 v{O+r}, v{O+r}, v{T2}')
    a(f'v_mul_f32 v{LA}, v{LA}, v{T2}\nv_mul_f32 v{LA+1}, v{LA+1}, v{T2}')
    a('s_branch C_norescale')
    a('C_done:')
    a(';STAMP')
    a(f'v_add_f32 v{LA+1}, v{LA}, v{LA+1}\nv_sub_f32 v{LA}, 0, v{NM}')
    a(f'ds_write_b64 v{vMLw}, {vr(LA,2)}')
    a('s_nop 1')
    for ct in range(6):
        for u in range(2):
            o = O + 16 * ct + 8 * u
            kf = KF + 4 * (2 * ct + u)
            for e in range(4): a(f'v_cvt_pk_bf16_f32 v{kf+e}, v{o+2*e}, v{o+2*e+1}')
            a(f'ds_write_b128 v{vOB}, {vr(kf)} offset:{ct*1024+u*256}')
    a('s_waitcnt vmcnt(0) lgkmcnt(0)\ns_barrier')
    a(f'v_mov_b32 v0, v{VL}')
    a('s_cmp_lt_i32 s5, 0\ns_cbranch_scc0 FIN')
    a('s_endpgm')

def gen_fin(a, cfg):
    a('FIN:')
    XP = 0 + 8
    MLr = 72
    WO = 104
    QV = 152
    AC = 156
    V1, V2, V3, V4, V5, V6, V7 = 1, 2, 3, 4, 5, 6, 7
    M, LS, W0, W1 = 164, 165, 166, 167
    a(f'v_lshlrev_b32 v{V1}, 4, v0')
    a(f's_min_u32 s6, s24, 5\ns_mul_i32 s7, s6, 12288\ns_add_u32 s7, s7, {WS_WO}')
    for k in range(12):
        if k and k % 4 == 0: a('s_add_u32 s7, s7, 4096')
        a(f'buffer_load_dwordx4 {vr(WO+4*k)}, v{V1}, s[20:23], s7 offen offset:{(k%4)*1024} sc1')
    srd(a, 12, P_Q, 6144); srd(a, 16, P_OUT, 6144)
    a(f'v_lshrrev_b32 v{V2}, 4, v0\nv_lshlrev_b32 v{V7}, 3, v{V2}')
    a('s_mul_i32 s8, s5, 384\ns_lshl_b32 s9, s6, 6\ns_add_u32 s8, s8, s9')
    a(f'buffer_load_dwordx2 {vr(QV,2)}, v{V7}, s[12:15], s8 offen\nbuffer_load_dwordx2 {vr(QV+2,2)}, v{V7}, s[12:15], s8 offen offset:32')
    a(f'v_and_b32 v{V3}, 31, v0\nv_lshrrev_b32 v{V4}, 5, v0')
    a(f'v_mul_u32_u24 v{V5}, 384, v{V4}\nv_lshl_add_u32 v{V5}, v{V3}, 4, v{V5}')
    a(f'v_mul_u32_u24 v{V6}, 43, v{V3}\nv_lshrrev_b32 v{V6}, 8, v{V6}')
    a(f'v_lshlrev_b32 v{M}, 5, v{V4}\nv_lshl_add_u32 v{M}, v{V6}, 3, v{M}')
    a(f'v_mov_b32 v{LS}, {OOB*2:#x}\nv_cmp_gt_u32 vcc, 24, v{V3}\ns_nop 1\nv_cndmask_b32 v{V5}, v{LS}, v{V5}, vcc\nv_cndmask_b32 v{W0}, v{LS}, v{M}, vcc')
    a(f'v_lshlrev_b32 v{W1}, 2, v{V3}')
    a(f's_lshl_b32 s9, s24, 7\ns_add_u32 s9, s9, {WS_FLAG}')
    a(f's_mul_i32 s10, s5, 98304\ns_mul_i32 s11, s24, 12288\ns_add_u32 s10, s10, s11\ns_add_u32 s10, s10, {WS_PART}')
    a(f's_lshl_b32 s11, s5, 13\ns_lshl_b32 s25, s24, 10\ns_add_u32 s11, s11, s25\ns_add_u32 s11, s11, {WS_ML}')
    if cfg.safe: a('s_mov_b32 s26, 0')
    a('F_poll:')
    a(f'buffer_load_dword v{M}, v{W1}, s[20:23], s9 offen sc1')
    a('s_waitcnt vmcnt(0)')
    a(f'v_cmp_eq_u32 vcc, 0, v{M}\ns_cbranch_vccz F_go')
    if cfg.safe: a('s_add_u32 s26, s26, 1\ns_cmp_lt_u32 s26, 100000\ns_cbranch_scc0 F_go')
    a('s_sleep 2\ns_branch F_poll')
    a('F_go:')
    a(';STAMP')
    for i in range(16):
        a(f'buffer_load_dwordx2 {vr(MLr+2*i,2)}, v{W0}, s[20:23], s11 offen offset:{64*i} sc1')
    for i in range(16):
        if i and i % 4 == 0: a('s_add_u32 s10, s10, 3072')
        a(f'buffer_load_dwordx4 {vr(XP+4*i)}, v{V5}, s[20:23], s10 offen offset:{768*(i%4)} sc1')
    a(f's_lshl_b32 s25, s24, 1\nv_add_u32 v{V4}, s25, v{V4}')
    a(f'v_mul_u32_u24 v{V5}, 768, v{V4}\nv_lshl_add_u32 v{V5}, v{V3}, 5, v{V5}')
    a(f'v_lshlrev_b32 v{V6}, 7, v{V6}\nv_lshl_add_u32 v{V6}, v{V4}, 3, v{V6}')
    for e in range(8): a(f'v_mov_b32 v{AC+e}, 0')
    a('s_waitcnt vmcnt(16)')
    a(f'v_max3_f32 v{M}, v{MLr}, v{MLr+2}, v{MLr+4}')
    for i in range(3, 15, 2): a(f'v_max3_f32 v{M}, v{M}, v{MLr+2*i}, v{MLr+2*i+2}')
    a(f'v_max_f32 v{M}, v{M}, v{MLr+30}')
    for i in range(16): a(f'v_sub_f32 v{MLr+2*i}, v{MLr+2*i}, v{M}')
    for i in range(16): a(f'v_exp_f32 v{MLr+2*i}, v{MLr+2*i}')
    for i in range(16): a(f'v_mul_f32 v{MLr+2*i}, v{MLr+2*i}, v{MLr+2*i+1}')
    for i in range(16): a(f'v_cvt_pk_bf16_f32 v{MLr+2*i}, v{MLr+2*i}, 0')
    for i in range(16): a(f'v_lshlrev_b32 v{MLr+2*i+1}, 16, v{MLr+2*i}')
    a(f'v_add_f32 v{LS}, v{MLr+1}, v{MLr+3}')
    for i in range(2, 16): a(f'v_add_f32 v{LS}, v{LS}, v{MLr+2*i+1}')
    for i in range(16):
        a(f's_waitcnt vmcnt({15-i})')
        for e in range(4):
            a(f'v_dot2c_f32_bf16 v{AC+2*e}, v{XP+4*i+e}, v{MLr+2*i}')
            a(f'v_dot2c_f32_bf16 v{AC+2*e+1}, v{XP+4*i+e}, v{MLr+2*i+1}')
    a(f'v_cmp_gt_u32 vcc, 24, v{V3}\ns_and_saveexec_b64 s[32:33], vcc')
    a(f'ds_write_b64 v{V6}, {vr(M,2)} offset:{FML}')
    a(f'ds_write_b128 v{V5}, {vr(AC)} offset:{FACC}\nds_write_b128 v{V5}, {vr(AC+4)} offset:{FACC+16}')
    a('s_mov_b64 exec, s[32:33]')
    a('s_waitcnt lgkmcnt(0)\ns_barrier')
    a('s_cmp_ge_u32 s24, 3\ns_cbranch_scc1 F_s3')
    a(f's_lshl_b32 s25, s24, 6\nv_add_u32 v{V3}, s25, v0')
    a(f'v_mul_u32_u24 v{V4}, 1366, v{V3}\nv_lshrrev_b32 v{V4}, 16, v{V4}\nv_lshlrev_b32 v{V4}, 7, v{V4}')
    a(f'v_lshlrev_b32 v{V5}, 2, v{V3}')
    for k in range(8): a(f'ds_read_b128 {vr(MLr+4*k)}, v{V4} offset:{FML+16*k}')
    for e in range(16): a(f'ds_read_b32 v{XP+e}, v{V5} offset:{FACC+768*e}')
    a('s_waitcnt lgkmcnt(15)')
    a('s_waitcnt lgkmcnt(0)')
    a(f'v_max3_f32 v{M}, v{MLr}, v{MLr+2}, v{MLr+4}')
    for i in range(3, 15, 2): a(f'v_max3_f32 v{M}, v{M}, v{MLr+2*i}, v{MLr+2*i+2}')
    a(f'v_max_f32 v{M}, v{M}, v{MLr+30}')
    for i in range(16): a(f'v_sub_f32 v{MLr+2*i}, v{MLr+2*i}, v{M}')
    for i in range(16): a(f'v_exp_f32 v{MLr+2*i}, v{MLr+2*i}')
    a(f'v_mul_f32 v{LS}, v{MLr}, v{MLr+1}\nv_mul_f32 v{W0}, v{MLr}, v{XP}')
    for i in range(1, 16):
        a(f'v_fmac_f32 v{LS}, v{MLr+2*i}, v{MLr+2*i+1}\nv_fmac_f32 v{W0}, v{MLr+2*i}, v{XP+i}')
    a(f'v_rcp_f32 v{LS}, v{LS}\nv_lshlrev_b32 v{V5}, 1, v{V3}\nv_mul_f32 v{W0}, v{W0}, v{LS}')
    a(f'v_cvt_pk_bf16_f32 v{W0}, v{W0}, v{W0}')
    a(f'ds_write_b16 v{V5}, v{W0} offset:{FCTX}')
    a('F_s3:')
    a('s_waitcnt lgkmcnt(0)\ns_barrier')
    a('s_cmp_ge_u32 s24, 6\ns_cbranch_scc1 F_end')
    a(f'v_lshlrev_b32 v{V3}, 4, v{V2}')
    for s in range(6): a(f'ds_read_b128 {vr(XP+4*s)}, v{V3} offset:{FCTX+64*s}')
    for t in range(2):
        a(f'v_lshlrev_b32 v{AC+4*t}, 16, v{QV+2*t}\nv_and_b32 v{AC+4*t+1}, 0xffff0000, v{QV+2*t}')
        a(f'v_lshlrev_b32 v{AC+4*t+2}, 16, v{QV+2*t+1}\nv_and_b32 v{AC+4*t+3}, 0xffff0000, v{QV+2*t+1}')
    a('s_waitcnt lgkmcnt(0)')
    for s in range(6):
        for t in range(2):
            c = '0' if s == 0 else vr(168 + 4 * t)
            a(f'v_mfma_f32_16x16x32_bf16 {vr(168+4*t)}, {vr(WO+4*(6*t+s))}, {vr(XP+4*s)}, {c}')
    a(f'v_and_b32 v{V3}, 15, v0\nv_cmp_eq_u32 vcc, 0, v{V3}\ns_and_saveexec_b64 s[32:33], vcc')
    a('s_nop 4')
    for t in range(2):
        a(f'v_cvt_pk_bf16_f32 v{M}, v{168+4*t}, v{169+4*t}\nv_cvt_pk_bf16_f32 v{LS}, v{170+4*t}, v{171+4*t}')
        a(f'v_lshlrev_b32 v{168+4*t}, 16, v{M}\nv_and_b32 v{169+4*t}, 0xffff0000, v{M}\nv_lshlrev_b32 v{170+4*t}, 16, v{LS}\nv_and_b32 v{171+4*t}, 0xffff0000, v{LS}')
        for r in range(4): a(f'v_add_f32 v{AC+4*t+r}, v{AC+4*t+r}, v{168+4*t+r}')
        a(f'v_cvt_pk_bf16_f32 v{176+2*t}, v{AC+4*t}, v{AC+4*t+1}\nv_cvt_pk_bf16_f32 v{177+2*t}, v{AC+4*t+2}, v{AC+4*t+3}')
        a(f'buffer_store_dwordx2 {vr(176+2*t,2)}, v{V7}, s[16:19], s8 offen offset:{32*t}')
    a('F_end:')
    a('s_endpgm')

STAMP = 16 << 20
def instrument(lines, v=255, vt=253, nw=8, srdr='s[20:23]', endlbl='M_end'):
    out = []
    def stamp(real=False):
        return [f'{"s_memrealtime" if real else "s_memtime"} s[96:97]', 's_waitcnt lgkmcnt(0)', 's_mov_b32 s94, m0', 's_mov_b32 m0, s99', 's_nop 0',
                f'v_writelane_b32 v{v}, s96, m0', 's_add_u32 s99, s99, 1', 's_mov_b32 m0, s94']
    prev = ''; nt = 0; started = False
    for ln in lines:
        t = ln.strip()
        if t == ';T':
            assert nt < 11
            out.append(f's_memtime s[{72+2*nt}:{73+2*nt}]'); nt += 1
        if t.startswith(';TFLUSH'):
            _, sreg, val = t.split()
            out.append(f's_memtime s[{72+2*nt}:{73+2*nt}]'); nt += 1
            out += ['s_waitcnt lgkmcnt(0)', f's_cmp_eq_u32 {sreg}, {val}', f's_cbranch_scc0 TF{len(out)}']
            lbl = out[-1].split()[-1]
            for i in range(nt): out.append(f'v_writelane_b32 v{v}, s{72+2*i}, {48+i}')
            out.append(lbl + ':'); nt = 0
        if t == 's_barrier' or t == ';STAMP':
            out += stamp()
        if t == 's_endpgm' and prev != endlbl + ':':
            out += stamp() + stamp(True)
            out += [f's_mul_i32 s98, s2, {nw*256}', 's_lshl_b32 s97, s95, 8', 's_add_u32 s98, s98, s97', f's_add_u32 s98, s98, {STAMP}',
                    's_mov_b64 exec, -1', f'v_mbcnt_lo_u32_b32 v{vt}, -1, 0', f'v_mbcnt_hi_u32_b32 v{vt}, -1, v{vt}', f'v_lshlrev_b32 v{vt}, 2, v{vt}',
                    f'buffer_store_dword v{v}, v{vt}, {srdr}, s98 offen']
        out.append(ln)
        if not started and t.startswith('s_cbranch_scc1') and t.endswith(endlbl):
            started = True
            out += ['s_mov_b32 s99, 0', f'v_lshrrev_b32 v{v}, 6, v0', 's_nop 0', f'v_readfirstlane_b32 s95, v{v}', f'v_mov_b32 v{v}, 0'] + stamp(True) + stamp()
        prev = t
    return out

def build(fn, st=False, **kw):
    cfg = Cfg()
    for k, x in kw.items(): setattr(cfg, k, x)
    a = Asm()
    a(header([(None, 256, 512, LDS_TOTAL)]))
    gen_kernel(a, cfg)
    a(kdesc(NAME + '_kernel', 256))
    if st: a.L = instrument(a.L)
    else: a.L = [x for x in a.L if not x.startswith(';T') and not x.startswith(';STAMP')]
    open(fn, 'w').write(a.text())

if __name__ == '__main__':
    build('v2_nt.s')
    build('v2_def.s', ld='')
    build('v2_st.s', st=True, safe=True)
```

```python
import sys
def hinst(lines, sel, endlane, wg=100, v=255, endlbl='M_end', dbg=68):
    out = []
    def stamp(real=False):
        return [f'{"s_memrealtime" if real else "s_memtime"} s[96:97]', 's_waitcnt lgkmcnt(0)', 's_mov_b32 s94, m0', 's_mov_b32 m0, s99', 's_nop 0',
                f'v_writelane_b32 v{v}, s96, m0', 's_add_u32 s99, s99, 1', 's_mov_b32 m0, s94']
    prev = ''; started = False; k = 0
    for ln in lines:
        t = ln.strip()
        if t.startswith(';T'): continue
        if t == 's_barrier' or t == ';STAMP':
            out += stamp()
        if t == 's_endpgm' and prev != endlbl + ':':
            out += stamp() + stamp(True)
            out += [f's_mov_b32 s88, s{dbg}', f's_mov_b32 s89, s{dbg+1}', 's_mov_b32 s90, 256', 's_mov_b32 s91, 0x20000',
                    f'v_readlane_b32 s92, v{v}, 0', f'v_readlane_b32 s93, v{v}, 1', 's_mov_b64 exec, 1', 's_not_b32 s87, s92',
                    'v_mov_b32 v250, s87', 'v_mov_b32 v251, 4', 'buffer_atomic_umax v250, v251, s[88:91], 0 offen',
                    'v_mov_b32 v248, s96', 's_cmp_lt_i32 s5, 0', 's_cselect_b32 s87, 12, 8', 'v_mov_b32 v249, s87', 'buffer_atomic_umax v248, v249, s[88:91], 0 offen',
                    f's_cmp_eq_u32 s2, {wg}', f's_cbranch_scc0 HI{k}', 's_cmp_eq_u32 s95, 0', f's_cbranch_scc0 HI{k}', 's_mov_b64 exec, -1']
            for j, l in enumerate(sel):
                out += [f'v_readlane_b32 s87, v{v}, {l}', 's_sub_u32 s87, s87, s93', f'v_writelane_b32 v246, s87, {4+j}']
            out += ['s_sub_u32 s87, s96, s92', 'v_writelane_b32 v246, s87, 15',
                    'v_mbcnt_lo_u32_b32 v247, -1, 0', 'v_mbcnt_hi_u32_b32 v247, -1, v247', 'v_lshlrev_b32 v247, 2, v247', 's_mov_b64 exec, 0xfff0',
                    'buffer_store_dword v246, v247, s[88:91], 0 offen', f'HI{k}:']
            k += 1
        out.append(ln)
        if not started and t.startswith('s_cbranch_scc1') and t.endswith(endlbl):
            started = True
            out += ['s_mov_b32 s99, 0', f'v_lshrrev_b32 v{v}, 6, v0', 's_nop 0', f'v_readfirstlane_b32 s95, v{v}', f'v_mov_b32 v{v}, 0'] + stamp(True) + stamp()
        prev = t
    return out
```

```python
import sys
sys.path.insert(0, 'exp')
from hinst import hinst
import gen2
from asmlib import *
for fn, ld in (('v2_h_nt.s', 'nt'), ('v2_h_def.s', '')):
    cfg = gen2.Cfg(); cfg.ld = ld
    a = Asm()
    a(header([(None, 256, 512, gen2.LDS_TOTAL)]))
    gen2.gen_kernel(a, cfg)
    a(kdesc(NAME + '_kernel', 256))
    a.L = hinst(a.L, [2,3,4,6,8,11,14,17,19,20,23], 24)
    open(fn, 'w').write(a.text())
```

```python
import sys
DIAG = 20 << 20
def conv(src, sel):
    out = []; prev = ''; k = 0; started = False
    L = src.split('\n')
    for ln in L:
        t = ln.strip()
        if t == 's_endpgm' and prev != 'M_end:':
            out += ['s_memrealtime s[74:75]', 's_waitcnt lgkmcnt(0)', 's_lshl_b32 s76, s2, 3', 's_add_u32 s76, s76, s95', 's_lshl_b32 s76, s76, 4', f's_add_u32 s76, s76, {DIAG}',
                    's_cmp_lt_i32 s5, 0', 's_cselect_b32 s77, s74, s72', 's_mov_b64 exec, 1',
                    'v_mov_b32 v248, s72', 'v_mov_b32 v249, s74', 'v_mov_b32 v250, s77', 'v_mov_b32 v251, s78', 'v_mov_b32 v252, 0',
                    'buffer_store_dwordx4 v[248:251], v252, s[20:23], s76 offen sc1',
                    's_lshl_b32 s76, s2, 3', 's_add_u32 s76, s76, s95', f's_cmp_eq_u32 s76, {120*8+7}', 's_cbranch_scc1 HD_special']
        if t == 'M_end:' :
            sp = ['HD_special:', 's_mov_b64 exec, -1',
                  'HD_w:', 's_sleep 16', 's_memrealtime s[74:75]', 's_waitcnt lgkmcnt(0)', 's_sub_u32 s74, s74, s72', 's_cmp_lt_u32 s74, 5000', 's_cbranch_scc1 HD_w',
                  'v_mbcnt_lo_u32_b32 v200, -1, 0', 'v_mbcnt_hi_u32_b32 v200, -1, v200', 'v_lshlrev_b32 v200, 4, v200', f's_mov_b32 s76, {DIAG}']
            for i in range(32):
                sp += [f'buffer_load_dwordx4 v[{4*i}:{4*i+3}], v200, s[20:23], s76 offen sc1', 's_add_u32 s76, s76, 1024']
            sp += ['s_waitcnt vmcnt(0)']
            for i in range(32):
                for c in range(3): sp += [f'v_subrev_u32 v{4*i+c}, s72, v{4*i+c}']
            for i in range(1, 32):
                sp += [f'v_min_i32 v0, v0, v{4*i}', f'v_max_i32 v1, v1, v{4*i+1}', f'v_max_i32 v2, v2, v{4*i+2}', f'v_add_u32 v3, v3, v{4*i+3}']
            sp += ['s_nop 1', 'v_readlane_b32 s80, v0, 0', 'v_readlane_b32 s81, v1, 0', 'v_readlane_b32 s82, v2, 0', 'v_readlane_b32 s83, v3, 0']
            for l in range(1, 64):
                sp += [f'v_readlane_b32 s84, v0, {l}', f'v_readlane_b32 s85, v1, {l}', f'v_readlane_b32 s86, v2, {l}', f'v_readlane_b32 s87, v3, {l}',
                       's_min_i32 s80, s80, s84', 's_max_i32 s81, s81, s85', 's_max_i32 s82, s82, s86', 's_add_u32 s83, s83, s87']
            sp += ['s_sub_u32 s81, s81, s80', 's_sub_u32 s82, s82, s80', 's_lshr_b32 s83, s83, 8',
                   's_mov_b32 s88, s68', 's_mov_b32 s89, s69', 's_mov_b32 s90, 256', 's_mov_b32 s91, 0x20000',
                   'v_mov_b32 v4, s80', 'v_mov_b32 v5, s81', 'v_mov_b32 v6, s82', 'v_mov_b32 v7, s83', 'v_mov_b32 v8, 32', 's_mov_b64 exec, 1',
                   'buffer_store_dwordx4 v[4:7], v8, s[88:91], 0 offen sc1']
            sp += [['s_mov_b32 s84, 0'], ['s_mov_b32 s84, s81'], ['s_mov_b32 s84, s82'], ['s_mov_b32 s84, s83']][sel]
            sp += ['s_min_u32 s84, s84, 14000', 's_add_u32 s84, s84, 6000', 's_add_u32 s72, s72, s80',
                   'HD_l:', 's_memrealtime s[74:75]', 's_waitcnt lgkmcnt(0)', 's_sub_u32 s74, s74, s72', 's_cmp_lt_u32 s74, s84', 's_cbranch_scc1 HD_l']
            out += sp
        out.append(ln)
        if not started and t == 's_cbranch_scc1 M_end':
            started = True
            out += ['s_memrealtime s[72:73]', 'v_lshrrev_b32 v255, 6, v0', 's_mov_b32 s78, 0', 'v_readfirstlane_b32 s95, v255']
        prev = t
    return '\n'.join(out)
if __name__ == '__main__':
    src = open(sys.argv[1]).read()
    for sel in map(int, sys.argv[3].split(',')):
        open(f'{sys.argv[2]}{sel}_nt.s', 'w').write(conv(src, sel))
```
